```python
import torch

def _softmax(x, axis=-1):
    return torch.softmax(x, dim=axis)
def _gelu(x):
    return torch.nn.functional.gelu(x, approximate="tanh")
def _silu(x):
    return torch.nn.functional.silu(x)
def _sigmoid(x):
    return torch.sigmoid(x)
def _layernorm(x, axis=-1, eps=1e-5):
    m = x.mean(dim=axis, keepdim=True)
    v = x.var(dim=axis, keepdim=True, unbiased=False)
    return (x - m) / torch.sqrt(v + eps)
def _scatter_add(tgt, idx, src, axis=0):
    return tgt.clone().index_add_(axis, idx, src)
def _segment_sum(src, seg, n):
    out = torch.zeros((n,) + src.shape[1:], dtype=src.dtype)
    return out.index_add_(0, seg, src)
def _pad(x, pw):
    flat = tuple(v for pair in reversed(pw) for v in pair)
    return torch.nn.functional.pad(x, flat)

kernel_name = 'recurrent_scan__compressed_kv_cla__dense_activation_mish__prompt'

def setup_inputs():

    _w = (lambda a: (lambda t: t.to(torch.bfloat16) if t.is_floating_point() else t)(torch.as_tensor(a)))
    def _A_setup():
        B, H, Sq, Sk, D, M = 1, 16, 2048, 2048, 256, 448
        Dc = 4 * D
        return {
            "x": _w((lambda *s: torch.randn(*s, dtype=torch.bfloat16) * 0.05)(B, Sq, M)),
            "c_kv": _w((lambda *s: torch.randn(*s, dtype=torch.bfloat16) * 0.8)(B, Sk, Dc)),
            "w_q": _w((lambda *s: torch.randn(*s, dtype=torch.bfloat16) * 1.6)(M, H, D) * (M ** -0.5)),
            "w_uk": _w((lambda *s: torch.randn(*s, dtype=torch.bfloat16) * 1.6)(Dc, H, D) * (Dc ** -0.5)),
            "w_uv": _w((lambda *s: torch.randn(*s, dtype=torch.bfloat16) * 0.8)(Dc, H, D) * (Dc ** -0.5)),
            "w_o": _w((lambda *s: torch.randn(*s, dtype=torch.bfloat16) * 0.8)(H, D, M) * ((H * D) ** -0.5)),
        }
    _A_in = _A_setup()

    def _B_setup():
        B, S, D, F = 1, 2048, 448, 1792
        return {
            "x": _w((lambda *s: torch.randn(*s, dtype=torch.bfloat16) * 0.05)(B, S, D)),
            "w1": _w((lambda *s: torch.randn(*s, dtype=torch.bfloat16) * 0.8)(D, F) * (D ** -0.5)),
            "b1": _w((lambda *s: torch.randn(*s, dtype=torch.bfloat16) * 0.8)(F)),
            "w2": _w((lambda *s: torch.randn(*s, dtype=torch.bfloat16) * 0.2)(F, D) * (F ** -0.5)),
        }
    _B_in = _B_setup()

    return {
        "A_x": _A_in["x"],
        "A_c_kv": _A_in["c_kv"],
        "A_w_q": _A_in["w_q"],
        "A_w_uk": _A_in["w_uk"],
        "A_w_uv": _A_in["w_uv"],
        "A_w_o": _A_in["w_o"],
        "B_x": _B_in["x"],
        "B_w1": _B_in["w1"],
        "B_b1": _B_in["b1"],
        "B_w2": _B_in["w2"],
    }

def reference(A_x, A_c_kv, A_w_q, A_w_uk, A_w_uv, A_w_o, B_x, B_w1, B_b1, B_w2):
    def _A_ref(x, c_kv, w_q, w_uk, w_uv, w_o):
        B, Sq, M = x.shape[0], x.shape[1], x.shape[2]
        Sk = c_kv.shape[1]
        H, D = w_q.shape[1], w_q.shape[2]
        q = torch.einsum("bqm,mhd->bhqd", x, w_q)
        k = torch.einsum("bkc,chd->bhkd", c_kv, w_uk)
        v = torch.einsum("bkc,chd->bhkd", c_kv, w_uv)
        scores = torch.einsum("bhqd,bhkd->bhqk", q, k) * (D ** -0.5)
        off = Sk - Sq
        qi = torch.arange(Sq)[:, None]
        kj = torch.arange(Sk)[None, :]
        cmask = kj <= (qi + off)
        scores = torch.where(cmask[None, None], scores, -1e9)
        p = _softmax(scores, axis=-1)
        ctx = torch.einsum("bhqk,bhkd->bhqd", p, v)
        return torch.einsum("bhqd,hdm->bqm", ctx, w_o)

    def _B_ref(x, w1, b1, w2):
        h = torch.einsum("bsd,df->bsf", x, w1) + b1
        sp = torch.log1p(torch.exp(-torch.abs(h))) + torch.where(h > 0, h, torch.zeros_like(h))
        act = h * torch.tanh(sp)
        return torch.einsum("bsf,fd->bsd", act, w2)

    x = A_x
    xn = _layernorm(x, axis=-1)
    s = _A_ref(xn, A_c_kv, A_w_q, A_w_uk, A_w_uv, A_w_o)
    g = _silu(_B_ref(xn, B_w1, B_b1, B_w2))
    return x + s * g
```

```python
NAME = "recurrent_scan__compressed_kv_cla__dense_activation_mish__prompt"
MB = 1 << 20
WS_XN, WS_Q, WS_K, WS_VT, WS_ACT, WS_CTX = 0, 4*MB, 20*MB, 36*MB, 52*MB, 60*MB

class E:
    def __init__(self):
        self.l = []
        self.n = 0
    def __call__(self, s):
        self.l.append("    " + s)
    def lab(self, s):
        self.l.append(s + ":")
    def uid(self, p="L"):
        self.n += 1
        return f"{p}_{self.n}"
    def c(self, s):
        self.l.append("    ; " + s)

def srd(e, sd, sbase, nbytes, add=0):
    if add:
        e(f"s_add_u32 s{sd}, s{sbase}, {add}")
        e(f"s_addc_u32 s{sd+1}, s{sbase+1}, 0")
    else:
        e(f"s_mov_b32 s{sd}, s{sbase}")
        e(f"s_mov_b32 s{sd+1}, s{sbase+1}")
    e(f"s_mov_b32 s{sd+2}, {nbytes}")
    e(f"s_mov_b32 s{sd+3}, 0x00020000")

ACC = 64
AF = 192
BF = 224
vAe, vAo, vBe, vBo = 4, 5, 6, 7
vAr = [8, 9, 10, 11]
vBr = [12, 13]

def acc(mt, nt):
    return ACC + (mt * 2 + nt) * 16

def gemm_setup(e, lda, ldb):
    e.c("---- gemm setup")
    e("s_and_b32 s28, s25, 1")
    e("s_lshr_b32 s29, s25, 1")
    e("v_lshrrev_b32 v3, 3, v2")
    e(f"s_lshl_b32 s30, s25, 5")
    e("s_add_u32 s30, s30, s26")
    e("v_add_u32 v3, s30, v3")
    e(f"s_mov_b32 s31, {lda}")
    e("v_mul_lo_u32 v3, v3, s31")
    e("v_and_b32 v14, 7, v2")
    e("v_lshrrev_b32 v15, 4, v2")
    e("v_xor_b32 v16, v14, v15")
    e(f"v_lshl_add_u32 v{vAe}, v16, 4, v3")
    e("v_add_u32 v15, 4, v15")
    e("v_xor_b32 v16, v14, v15")
    e(f"v_lshl_add_u32 v{vAo}, v16, 4, v3")
    e("v_lshrrev_b32 v3, 5, v2")
    e("s_lshl_b32 s30, s25, 3")
    e("v_add_u32 v14, s30, v3")
    e(f"s_mov_b32 s31, {ldb}")
    e("v_mul_lo_u32 v14, v14, s31")
    e("s_lshl_b32 s30, s27, 1")
    e("v_add_u32 v14, s30, v14")
    e("v_and_b32 v15, 3, v2")
    e("v_lshl_add_u32 v14, v15, 4, v14")
    e("v_bfe_u32 v15, v2, 2, 3")
    e("v_xor_b32 v16, v15, v3")
    e(f"v_lshl_add_u32 v{vBe}, v16, 6, v14")
    e("v_add_u32 v3, 2, v3")
    e("v_xor_b32 v16, v15, v3")
    e(f"v_lshl_add_u32 v{vBo}, v16, 6, v14")
    e("v_and_b32 v3, 31, v2")
    e("v_lshrrev_b32 v14, 5, v2")
    e("v_bfe_u32 v15, v2, 1, 3")
    e("v_xor_b32 v14, v14, v15")
    e("v_lshlrev_b32 v3, 7, v3")
    e("v_lshl_add_u32 v3, v14, 4, v3")
    e("s_lshl_b32 s30, s28, 14")
    e("v_add_u32 v3, s30, v3")
    for s in range(4):
        e(f"v_xor_b32 v{vAr[s]}, {32*s}, v3")
    e("v_lshrrev_b32 v3, 5, v2")
    e("v_bfe_u32 v14, v2, 2, 2")
    e("v_lshl_add_u32 v3, v3, 3, v14")
    e("v_lshlrev_b32 v3, 9, v3")
    e("v_bfe_u32 v15, v2, 4, 1")
    e("v_lshl_add_u32 v3, v15, 5, v3")
    e("v_and_b32 v15, 3, v2")
    e("v_lshl_add_u32 v3, v15, 3, v3")
    e("v_add_u32 v3, 0x8000, v3")
    for b in range(2):
        e(f"s_lshl_b32 s30, s29, 1")
        e(f"s_add_u32 s30, s30, {b}")
        e("s_lshr_b32 s31, s30, 2")
        e("s_lshl_b32 s31, s31, 8")
        e("s_and_b32 s30, s30, 3")
        e("v_xor_b32 v15, s30, v14")
        e("v_lshl_add_u32 v15, v15, 6, v3")
        e(f"v_add_u32 v{vBr[b]}, s31, v15")

def gemm_dma(e, lda, ldb):
    for q in range(4):
        e(f"s_add_u32 m0, s24, {q*1024}")
        e(f"s_add_u32 s23, s21, {q*8*lda}")
        e(f"buffer_load_dwordx4 v{vAe if q%2==0 else vAo}, s[8:11], s23 offen lds")
    for q in range(4):
        e(f"s_add_u32 m0, s24, {32768+q*1024}")
        e(f"s_add_u32 s23, s22, {q*2*ldb}")
        e(f"buffer_load_dwordx4 v{vBe if q%2==0 else vBo}, s[12:15], s23 offen lds")

def gemm_reads(e, s, buf):
    for mt in range(4):
        r = AF + buf*16 + mt*4
        e(f"ds_read_b128 v[{r}:{r+3}], v{vAr[s]} offset:{mt*4096}")
    for nt in range(2):
        r = BF + buf*8 + nt*4
        e(f"ds_read_b64_tr_b16 v[{r}:{r+1}], v{vBr[nt]} offset:{(16*s)*512}")
        e(f"ds_read_b64_tr_b16 v[{r+2}:{r+3}], v{vBr[nt]} offset:{(16*s+4)*512}")

def gemm_mfmas(e, buf, swap):
    for mt in range(4):
        for nt in range(2):
            a = AF + buf*16 + mt*4
            b = BF + buf*8 + nt*4
            d = acc(mt, nt)
            if swap:
                e(f"v_mfma_f32_32x32x16_bf16 v[{d}:{d+15}], v[{a}:{a+3}], v[{b}:{b+3}], v[{d}:{d+15}]")
            else:
                e(f"v_mfma_f32_32x32x16_bf16 v[{d}:{d+15}], v[{b}:{b+3}], v[{a}:{a+3}], v[{d}:{d+15}]")

def gemm_main(e, lda, ldb, nk, swap):
    e.c("---- gemm main loop")
    for r in range(128):
        e(f"v_mov_b32 v{ACC+r}, 0")
    e("s_mov_b32 s21, 0")
    e("s_mov_b32 s22, 0")
    e("s_lshl_b32 s24, s25, 12")
    gemm_dma(e, lda, ldb)
    e("s_mov_b32 s20, 0")
    L = e.uid("gk")
    Ls = e.uid("gs")
    e.lab(L)
    e("s_waitcnt vmcnt(0)")
    e("s_barrier")
    gemm_reads(e, 0, 0)
    e("s_add_u32 s20, s20, 1")
    e(f"s_cmp_ge_u32 s20, {nk}")
    e(f"s_cbranch_scc1 {Ls}")
    e("s_add_u32 s21, s21, 128")
    e(f"s_add_u32 s22, s22, {64*ldb}")
    e("s_xor_b32 s24, s24, 0x10000")
    gemm_dma(e, lda, ldb)
    e.lab(Ls)
    for s in range(4):
        if s < 3:
            gemm_reads(e, s+1, (s+1) % 2)
            e("s_waitcnt lgkmcnt(8)")
        else:
            e("s_waitcnt lgkmcnt(0)")
        gemm_mfmas(e, s % 2, swap)
    for v in vAr + vBr:
        e(f"v_xor_b32 v{v}, 0x10000, v{v}")
    e(f"s_cmp_lt_u32 s20, {nk}")
    e(f"s_cbranch_scc1 {L}")
    e("s_nop 15")
    e("s_barrier")

def gemm_epilogue_store(e, swap, ldo, pre=None):
    e.c("---- epilogue")
    ST = 528
    e("v_and_b32 v3, 31, v2")
    e("v_lshrrev_b32 v14, 5, v2")
    if not swap:
        e("s_lshl_b32 s30, s28, 7")
        e("v_add_u32 v3, s30, v3")
        e(f"v_mul_u32_u24 v3, {ST}, v3")
        e("v_lshl_add_u32 v3, v14, 3, v3")
        e("s_lshl_b32 s30, s29, 7")
        e("v_add_u32 v3, s30, v3")
    else:
        e("s_lshl_b32 s30, s29, 6")
        e("v_add_u32 v3, s30, v3")
        e(f"v_mul_u32_u24 v3, {ST}, v3")
        e("v_lshl_add_u32 v3, v14, 4, v3")
        e("s_lshl_b32 s30, s28, 8")
        e("v_add_u32 v3, s30, v3")
    for mt in range(4):
        for nt in range(2):
            d = acc(mt, nt)
            if pre:
                pre(e, mt, nt)
            for j in range(4):
                e(f"v_cvt_pk_bf16_f32 v{16+2*(j%2)}, v{d+4*j}, v{d+4*j+1}")
                e(f"v_cvt_pk_bf16_f32 v{17+2*(j%2)}, v{d+4*j+2}, v{d+4*j+3}")
                if not swap:
                    off = mt*32*ST + nt*64 + j*16
                else:
                    off = nt*32*ST + mt*64 + (j >> 1)*32 + (j & 1)*8
                e(f"ds_write_b64 v3, v[{16+2*(j%2)}:{17+2*(j%2)}] offset:{off}")
    e("s_waitcnt lgkmcnt(0)")
    e("s_barrier")
    e("v_lshrrev_b32 v3, 5, v2")
    e("s_lshl_b32 s30, s25, 5")
    e("v_add_u32 v3, s30, v3")
    e("v_and_b32 v14, 31, v2")
    e(f"v_mul_u32_u24 v15, {ST}, v3")
    e("v_lshl_add_u32 v15, v14, 4, v15")
    r0, c0 = ("s26", "s27") if not swap else ("s27", "s26")
    e(f"v_add_u32 v3, {r0}, v3")
    e(f"s_mov_b32 s31, {ldo}")
    e("v_mul_lo_u32 v3, v3, s31")
    e("v_lshl_add_u32 v3, v14, 4, v3")
    e(f"s_lshl_b32 s30, {c0}, 1")
    e("v_add_u32 v3, s30, v3")
    for q in range(16):
        r = 20 + (q % 4) * 4
        e(f"ds_read_b128 v[{r}:{r+3}], v15 offset:{q*2*ST}")
        if q % 4 == 3:
            for qq in range(q-3, q+1):
                rr = 20 + (qq % 4) * 4
                e(f"s_waitcnt lgkmcnt({q-qq})")
                e(f"s_mov_b32 s30, {qq*2*ldo}")
                e(f"buffer_store_dwordx4 v[{rr}:{rr+3}], v3, s[16:19], s30 offen")
            e("s_nop 1")

def common_entry(e):
    e("s_load_dwordx2 s[4:5], s[0:1], 96")
    e("v_lshrrev_b32 v1, 6, v0")
    e("v_and_b32 v2, 63, v0")
    e("s_nop 0")
    e("v_readfirstlane_b32 s25, v1")

def k1(e):
    kn = "k1_kernel"
    e.l.append(f".p2align 8\n{kn}:")
    common_entry(e)
    e("s_cmp_ge_u32 s2, 288")
    e("s_cbranch_scc1 k1_end")
    e("s_cmp_ge_u32 s2, 256")
    e("s_cbranch_scc1 k1_ln")
    e("s_load_dwordx2 s[6:7], s[0:1], 8")
    e("s_load_dwordx4 s[32:35], s[0:1], 24")
    e("s_and_b32 s30, s2, 7")
    e("s_lshr_b32 s31, s2, 3")
    e("s_lshl_b32 s30, s30, 2")
    e("s_and_b32 s36, s31, 3")
    e("s_add_u32 s36, s36, s30")
    e("s_lshr_b32 s26, s31, 2")
    e("s_lshl_b32 s26, s26, 8")
    e("s_and_b32 s27, s36, 15")
    e("s_lshl_b32 s27, s27, 8")
    e("s_waitcnt lgkmcnt(0)")
    srd(e, 8, 6, 2048*1024*2)
    e("s_cmp_ge_u32 s36, 16")
    e("s_cselect_b32 s32, s34, s32")
    e("s_cselect_b32 s33, s35, s33")
    srd(e, 12, 32, 1024*4096*2)
    e("s_cbranch_scc1 k1_v")
    srd(e, 16, 4, 2048*4096*2, WS_K)
    gemm_setup(e, 2048, 8192)
    gemm_main(e, 2048, 8192, 16, False)
    gemm_epilogue_store(e, False, 8192)
    e("s_endpgm")
    e.lab("k1_v")
    srd(e, 16, 4, 2048*4096*2, WS_VT)
    gemm_setup(e, 2048, 8192)
    gemm_main(e, 2048, 8192, 16, True)
    gemm_epilogue_store(e, True, 4096)
    e("s_endpgm")
    e.lab("k1_ln")
    e("s_load_dwordx2 s[6:7], s[0:1], 0")
    e("s_sub_u32 s30, s2, 256")
    e("s_lshl_b32 s30, s30, 3")
    e("s_add_u32 s30, s30, s25")
    e("s_lshl_b32 s30, s30, 3")
    e("s_mul_i32 s30, s30, 896")
    e("s_waitcnt lgkmcnt(0)")
    srd(e, 8, 6, 2048*448*2)
    srd(e, 16, 4, 2048*448*2, WS_XN)
    e("v_lshlrev_b32 v3, 4, v2")
    e("v_cmp_gt_u32 vcc, 56, v2")
    e("s_and_saveexec_b64 s[40:41], vcc")
    for r in range(8):
        e(f"s_add_u32 s43, s30, {r*896}")
        e(f"buffer_load_dwordx4 v[{64+4*r}:{67+4*r}], v3, s[8:11], s43 offen")
    e("s_mov_b64 exec, s[40:41]")
    e("s_mov_b32 s31, 0xffff0000")
    for r in range(8):
        b = 64 + 4*r
        e(f"s_waitcnt vmcnt({7-r})")
        for i in range(4):
            e(f"v_lshlrev_b32 v{16+2*i}, 16, v{b+i}")
            e(f"v_and_b32 v{17+2*i}, s31, v{b+i}")
        e("s_nop 0")
        for i in range(8):
            e(f"v_cndmask_b32 v{16+i}, 0, v{16+i}, vcc")
        e("v_add_f32 v24, v16, v17")
        for i in range(2, 8):
            e(f"v_add_f32 v24, v24, v{16+i}")
        wave_sum(e, 24, 25)
        e("v_mul_f32 v25, 0x3b124925, v25")
        for i in range(8):
            e(f"v_sub_f32 v{32+i}, v{16+i}, v25")
            e(f"v_cndmask_b32 v{32+i}, 0, v{32+i}, vcc")
        e("v_mul_f32 v24, v32, v32")
        for i in range(1, 8):
            e(f"v_fmac_f32 v24, v{32+i}, v{32+i}")
        wave_sum(e, 24, 26)
        e("v_mul_f32 v26, 0x3b124925, v26")
        bf16_round(e, 25, 27)
        bf16_round(e, 26, 27)
        e("v_add_f32 v26, 0x3727c5ac, v26")
        bf16_round(e, 26, 27)
        e("v_sqrt_f32 v26, v26")
        e("s_nop 0")
        bf16_round(e, 26, 27)
        e("v_rcp_f32 v28, v26")
        e("s_nop 0")
        for i in range(8):
            e(f"v_sub_f32 v{32+i}, v{16+i}, v25")
        for i in range(4):
            e(f"v_cvt_pk_bf16_f32 v{40+i}, v{32+2*i}, v{33+2*i}")
        for i in range(4):
            e(f"v_lshlrev_b32 v{32+2*i}, 16, v{40+i}")
            e(f"v_and_b32 v{33+i*2}, s31, v{40+i}")
        for i in range(8):
            e(f"v_mul_f32 v{48+i}, v{32+i}, v28")
            e(f"v_fma_f32 v{56}, -v{48+i}, v26, v{32+i}")
            e(f"v_fmac_f32 v{48+i}, v56, v28")
        for i in range(4):
            e(f"v_cvt_pk_bf16_f32 v{40+i}, v{48+2*i}, v{49+2*i}")
        e("s_and_saveexec_b64 s[40:41], vcc")
        e(f"s_add_u32 s43, s30, {r*896}")
        e(f"buffer_store_dwordx4 v[40:43], v3, s[16:19], s43 offen")
        e("s_mov_b64 exec, s[40:41]")
        e("s_nop 1")
    e.lab("k1_end")
    e("s_endpgm")


def k2(e):
    kn = "k2_kernel"
    e.l.append(f".p2align 8\n{kn}:")
    common_entry(e)
    e("s_cmp_ge_u32 s2, 184")
    e("s_cbranch_scc1 k2_end")
    e("s_load_dwordx2 s[32:33], s[0:1], 16")
    e("s_load_dwordx4 s[36:39], s[0:1], 56")
    e("s_and_b32 s26, s2, 7")
    e("s_lshl_b32 s26, s26, 8")
    e("s_lshr_b32 s31, s2, 3")
    e("s_waitcnt lgkmcnt(0)")
    srd(e, 8, 4, 2048*448*2, WS_XN)
    e("s_cmp_ge_u32 s31, 16")
    e("s_cbranch_scc1 k2_h")
    e("s_lshl_b32 s27, s31, 8")
    srd(e, 12, 32, 448*4096*2)
    srd(e, 16, 4, 2048*4096*2, WS_Q)
    gemm_setup(e, 896, 8192)
    gemm_main(e, 896, 8192, 7, False)
    gemm_epilogue_store(e, False, 8192)
    e("s_endpgm")
    e.lab("k2_h")
    e("s_sub_u32 s31, s31, 16")
    e("s_lshl_b32 s27, s31, 8")
    srd(e, 12, 36, 448*1792*2)
    srd(e, 16, 4, 2048*1792*2, WS_ACT)
    gemm_setup(e, 896, 3584)
    gemm_main(e, 896, 3584, 7, False)
    srd(e, 44, 38, 1792*2)
    e("v_lshrrev_b32 v3, 5, v2")
    e("v_lshlrev_b32 v3, 3, v3")
    e("s_lshl_b32 s30, s29, 6")
    e("s_add_u32 s30, s30, s27")
    e("s_lshl_b32 s30, s30, 1")
    e("v_add_u32 v3, s30, v3")
    for nt in range(2):
        for j in range(4):
            r = 192 + (nt*4+j)*4
            e(f"buffer_load_dwordx2 v[{r}:{r+1}], v3, s[44:47], 0 offen offset:{nt*64+j*16}")
    e("s_waitcnt vmcnt(0)")
    e("s_mov_b32 s31, 0xffff0000")
    for nt in range(2):
        for j in range(4):
            r = 192 + (nt*4+j)*4
            e(f"v_lshlrev_b32 v{r+2}, 16, v{r+1}")
            e(f"v_and_b32 v{r+3}, s31, v{r+1}")
            e(f"v_and_b32 v{r+1}, s31, v{r}")
            e(f"v_lshlrev_b32 v{r}, 16, v{r}")
    e("s_mov_b32 s44, 0x3fb8aa3b")
    e("s_mov_b32 s45, 0x41f00000")
    def pre(e, mt, nt):
        d = acc(mt, nt)
        for i in range(0, 16, 2):
            e(f"v_cvt_pk_bf16_f32 v240, v{d+i}, v{d+i+1}")
            e(f"v_lshlrev_b32 v{d+i}, 16, v240")
            e(f"v_and_b32 v{d+i+1}, s31, v240")
        for i in range(16):
            e(f"v_add_f32 v{d+i}, v{d+i}, v{192+(nt*4+i//4)*4+i%4}")
        for i in range(0, 16, 2):
            e(f"v_cvt_pk_bf16_f32 v240, v{d+i}, v{d+i+1}")
            e(f"v_lshlrev_b32 v{d+i}, 16, v240")
            e(f"v_and_b32 v{d+i+1}, s31, v240")
        for i in range(16):
            e(f"v_min_f32 v241, s45, v{d+i}")
            e(f"v_mul_f32 v241, s44, v241")
            e(f"v_exp_f32 v241, v241")
            e("s_nop 0")
            e(f"v_add_f32 v242, 2.0, v241")
            e(f"v_mul_f32 v242, v242, v241")
            e(f"v_add_f32 v243, 2.0, v242")
            e(f"v_rcp_f32 v243, v243")
            e("s_nop 0")
            e(f"v_mul_f32 v242, v242, v243")
            e(f"v_mul_f32 v{d+i}, v{d+i}, v242")
    gemm_epilogue_store(e, False, 3584, pre)
    e.lab("k2_end")
    e("s_endpgm")


O0 = 128
SC, SN = 96, 112
PF = 88
FR = 64
vKd = list(range(32, 40))
vVd = [40, 41]
vKr = list(range(42, 58))
vVr = [58, 59]
vM, vL, vThr = 20, 21, 22
MRG = 131072
C_SCALE = 0x3db8aa3b

def att_dma(e):
    ops = []
    e("s_lshl_b32 s54, s50, 19")
    e("s_lshl_b32 s55, s51, 7")
    for q in range(8):
        ops.append([f"s_add_u32 m0, s52, {q*1024}", f"s_add_u32 s23, s54, {q*2*8192}",
                    f"buffer_load_dwordx4 v{vKd[q]}, s[8:11], s23 offen lds"])
    for q in range(8):
        ops.append([f"s_add_u32 m0, s53, {q*1024}", f"s_add_u32 s23, s55, {q*8*4096}",
                    f"buffer_load_dwordx4 v{vVd[q%2]}, s[12:15], s23 offen lds"])
    return ops

def att_next_idx(e):
    if False:
        e.c("unused:" + """
    # flat index n -> tile = n < TA ? n : n - TA ; clamp n <= 32
    """.strip().splitlines()[0])
    for (sf, st) in ((48, 50), (49, 51)):
        e(f"s_add_u32 s{sf}, s{sf}, 1")
        e(f"s_min_u32 s{sf}, s{sf}, 32")
        e(f"s_sub_u32 s{st}, s{sf}, s46")
        e(f"s_cmp_lt_u32 s{sf}, s46")
        e(f"s_cselect_b32 s{st}, s{sf}, s{st}")

def softmax_ops(e, mask):
    ops = []
    if mask:
        for r in range(16):
            kk = 8*(r//4) + (r % 4)
            ops.append(f"v_cmp_le_i32 vcc, {kk}, v{vThr}")
            ops.append(f"v_cndmask_b32 v{SC+r}, v23, v{SC+r}, vcc")
    ops.append(f"v_max3_f32 v24, v{SC}, v{SC+1}, v{SC+2}")
    ops.append(f"v_max3_f32 v25, v{SC+3}, v{SC+4}, v{SC+5}")
    ops.append(f"v_max3_f32 v26, v{SC+6}, v{SC+7}, v{SC+8}")
    ops.append(f"v_max3_f32 v27, v{SC+9}, v{SC+10}, v{SC+11}")
    ops.append(f"v_max3_f32 v24, v24, v{SC+12}, v{SC+13}")
    ops.append(f"v_max3_f32 v25, v25, v{SC+14}, v{SC+15}")
    ops.append(f"v_max3_f32 v24, v24, v25, v26")
    ops.append(f"v_max_f32 v24, v24, v27")
    ops.append("v_mov_b32 v25, v24")
    ops.append("s_nop 1")
    ops.append("v_permlane32_swap_b32 v24, v25")
    ops.append("v_max_f32 v24, v24, v25")
    ops.append(f"v_mul_f32 v24, s56, v24")
    ops.append(f"v_add_f32 v25, 8.0, v{vM}".replace("8.0", "0x41000000"))
    ops.append("v_cmp_gt_f32 vcc, v24, v25")
    ops.append("RESCALE")
    for r in range(16):
        ops.append(f"v_fma_f32 v{SC+r}, v{SC+r}, s56, -v{vM}")
        ops.append(f"v_exp_f32 v{SC+r}, v{SC+r}")
    for r in range(16):
        ops.append(f"v_add_f32 v{vL}, v{vL}, v{SC+r}")
    for i in range(8):
        ops.append(f"v_cvt_pk_bf16_f32 v{PF+i}, v{SC+2*i}, v{SC+2*i+1}")
    return ops

def emit_rescale(e):
    L = e.uid("nors")
    e(f"s_cbranch_vccz {L}")
    e(f"v_max_f32 v24, v24, v{vM}")
    e(f"v_sub_f32 v25, v{vM}, v24")
    e("v_exp_f32 v25, v25")
    e(f"v_mov_b32 v{vM}, v24")
    e(f"v_mul_f32 v{vL}, v{vL}, v25")
    for r in range(128):
        e(f"v_mul_f32 v{O0+r}, v25, v{O0+r}")
    e.lab(L)

def att_body(e, mask, nextQ):
    e("s_waitcnt vmcnt(0)")
    e("s_barrier")
    att_next_idx(e)
    dma = att_dma(e)
    sm = softmax_ops(e, mask)
    out = 0
    def flush_some(n):
        for _ in range(n):
            if sm:
                o = sm.pop(0)
                if o == "RESCALE":
                    emit_rescale(e)
                else:
                    e(o)
    if nextQ is not None:
        for s in range(3):
            r = FR + (s % 4)*4
            e(f"ds_read_b128 v[{r}:{r+3}], v{vKr[s]}")
        for s in range(16):
            if s + 3 < 16:
                r = FR + ((s+3) % 4)*4
                e(f"ds_read_b128 v[{r}:{r+3}], v{vKr[s+3]}")
                e("s_waitcnt lgkmcnt(3)")
            else:
                e(f"s_waitcnt lgkmcnt({15-s})")
            r = FR + (s % 4)*4
            q = nextQ + 4*s
            c = "0" if s == 0 else f"v[{SN}:{SN+15}]"
            e(f"v_mfma_f32_32x32x16_bf16 v[{SN}:{SN+15}], v[{r}:{r+3}], a[{q}:{q+3}], {c}")
            flush_some(6)
            if dma:
                for o in dma.pop(0):
                    e(o)
    while sm:
        flush_some(1)
    while dma:
        for o in dma.pop(0):
            e(o)
    seq = [(dt, s) for dt in range(8) for s in range(2)]
    for i in range(3):
        dt, s = seq[i]
        r = FR + (i % 4)*4
        e(f"ds_read_b128 v[{r}:{r+3}], v{vVr[s]} offset:{dt*4096}")
    for i in range(16):
        if i + 3 < 16:
            dt, s = seq[i+3]
            r = FR + ((i+3) % 4)*4
            e(f"ds_read_b128 v[{r}:{r+3}], v{vVr[s]} offset:{dt*4096}")
            e("s_waitcnt lgkmcnt(3)")
        else:
            e(f"s_waitcnt lgkmcnt({15-i})")
        dt, s = seq[i]
        r = FR + (i % 4)*4
        o = O0 + dt*16
        e(f"v_mfma_f32_32x32x16_bf16 v[{o}:{o+15}], v[{r}:{r+3}], v[{PF+4*s}:{PF+4*s+3}], v[{o}:{o+15}]")
    for v in vKr + vVr:
        e(f"v_xor_b32 v{v}, 0x8000, v{v}")
    e("s_xor_b32 s52, s52, 0x8000")
    e("s_xor_b32 s53, s53, 0x8000")
    if nextQ is not None:
        for r in range(16):
            e(f"v_mov_b32 v{SC+r}, v{SN+r}")

def att_finalize(e, sq):
    e("s_nop 15")
    e(f"v_mov_b32 v24, v{vL}")
    e(f"v_mov_b32 v25, v{vL}")
    e("s_nop 1")
    e("v_permlane32_swap_b32 v24, v25")
    e(f"v_add_f32 v{vL}, v24, v25")
    e("v_lshlrev_b32 v26, 4, v2")
    e("s_lshl_b32 s30, s28, 13")
    e(f"v_add_u32 v26, s30, v26")
    e(f"v_add_u32 v26, {MRG}, v26")
    e("v_lshlrev_b32 v27, 3, v2")
    e("s_lshl_b32 s30, s28, 9")
    e("v_add_u32 v27, s30, v27")
    e(f"v_add_u32 v27, {MRG+16384}, v27")
    Lw = e.uid("fw"); Le = e.uid("fe")
    for u in range(4):
        e("s_cmp_eq_u32 s29, 0")
        e(f"s_cbranch_scc1 {Lw}_{u}")
        if u == 0:
            e(f"ds_write_b64 v27, v[{vM}:{vL}]")
        for k in range(8):
            r = O0 + u*32 + k*4
            e(f"ds_write_b128 v26, v[{r}:{r+3}] offset:{k*1024}")
        e("s_waitcnt lgkmcnt(0)")
        e("s_barrier")
        e("s_barrier")
        e(f"s_branch {Le}_{u}")
        e.lab(f"{Lw}_{u}")
        e("s_barrier")
        if u == 0:
            e(f"ds_read_b64 v[28:29], v27")
        for k in range(8):
            e(f"ds_read_b128 v[{FR+0}:{FR+3}], v26 offset:{k*1024}") if False else None
        for k in range(8):
            e(f"ds_read_b128 v[{64+k*4}:{64+k*4+3}], v26 offset:{k*1024}")
        e("s_waitcnt lgkmcnt(0)")
        e("s_barrier")
        if u == 0:
            e(f"v_max_f32 v30, v{vM}, v28")
            e(f"v_sub_f32 v24, v{vM}, v30")
            e(f"v_sub_f32 v25, v28, v30")
            e("v_exp_f32 v24, v24")
            e("v_exp_f32 v25, v25")
            e("s_nop 0")
            e(f"v_mul_f32 v30, v{vL}, v24")
            e("v_fmac_f32 v30, v29, v25")
            e("v_rcp_f32 v30, v30")
            e("s_nop 0")
            e("v_mul_f32 v24, v24, v30")
            e("v_mul_f32 v25, v25, v30")
        for k in range(32):
            r = O0 + u*32 + k
            e(f"v_mul_f32 v{r}, v24, v{r}")
            e(f"v_fmac_f32 v{r}, v25, v{64+k}")
        for k in range(8):
            r = O0 + u*32 + k*4
            dt = u*2 + k//4
            j = k % 4
            e(f"v_cvt_pk_bf16_f32 v{r}, v{r}, v{r+1}")
            e(f"v_cvt_pk_bf16_f32 v{r+1}, v{r+2}, v{r+3}")
            e(f"buffer_store_dwordx2 v[{r}:{r+1}], v31, s[16:19], s{sq} offen offset:{dt*64+j*16}")
        e.lab(f"{Le}_{u}")

def att_init(e):
    e(f"v_mov_b32 v{vM}, 0xf149f2ca")
    e(f"v_mov_b32 v{vL}, 0")
    for r in range(128):
        e(f"v_mov_b32 v{O0+r}, 0")

def k3(e):
    kn = "k3_kernel"
    e.l.append(f".p2align 8\n{kn}:")
    common_entry(e)
    e("s_cmp_ge_u32 s2, 256")
    e("s_cbranch_scc1 k3_end")
    e("s_and_b32 s30, s2, 7")
    e("s_lshl_b32 s30, s30, 1")
    e("s_bfe_u32 s31, s2, 0x10003")
    e("s_add_u32 s44, s30, s31")
    e("s_lshr_b32 s45, s2, 4")
    e("s_add_u32 s46, s45, 1")
    e("s_sub_u32 s47, 32, s45")
    e("s_and_b32 s28, s25, 1")
    e("s_lshr_b32 s29, s25, 1")
    e("s_waitcnt lgkmcnt(0)")
    srd(e, 8, 4, 2048*4096*2, WS_K)
    srd(e, 12, 4, 2048*4096*2, WS_VT)
    srd(e, 16, 4, 2048*4096*2, WS_CTX)
    srd(e, 60, 4, 2048*4096*2, WS_Q)
    e(f"s_mov_b32 s56, {C_SCALE}")
    e("v_lshrrev_b32 v3, 5, v2")
    e("v_and_b32 v14, 31, v2")
    e("v_xor_b32 v14, v14, v3")
    e("s_lshl_b32 s30, s25, 4")
    e("v_add_u32 v3, s30, v3")
    e("v_lshlrev_b32 v3, 13, v3")
    e("v_lshl_add_u32 v3, v14, 4, v3")
    e("s_lshl_b32 s30, s44, 9")
    e("v_add_u32 v3, s30, v3")
    for q in range(8):
        e(f"v_xor_b32 v{vKd[q]}, {q*32}, v3")
    e("v_lshrrev_b32 v3, 3, v2")
    e("s_lshl_b32 s30, s25, 6")
    e("s_lshl_b32 s31, s44, 8")
    e("s_add_u32 s30, s30, s31")
    e("v_add_u32 v3, s30, v3")
    e("v_lshlrev_b32 v3, 12, v3")
    e("v_and_b32 v14, 7, v2")
    e("v_lshrrev_b32 v15, 4, v2")
    e("v_xor_b32 v16, v14, v15")
    e(f"v_lshl_add_u32 v{vVd[0]}, v16, 4, v3")
    e("v_add_u32 v15, 4, v15")
    e("v_xor_b32 v16, v14, v15")
    e(f"v_lshl_add_u32 v{vVd[1]}, v16, 4, v3")
    e("v_and_b32 v3, 31, v2")
    e("v_lshrrev_b32 v14, 5, v2")
    e("v_and_b32 v15, 15, v2")
    e("v_xor_b32 v14, v14, v15")
    e("s_lshl_b32 s30, s29, 5")
    e("v_add_u32 v3, s30, v3")
    e("v_lshlrev_b32 v3, 9, v3")
    e("v_lshl_add_u32 v3, v14, 4, v3")
    for s in range(16):
        e(f"v_xor_b32 v{vKr[s]}, {32*s}, v3")
    e("v_and_b32 v3, 31, v2")
    e("v_lshrrev_b32 v14, 5, v2")
    e("s_lshl_b32 s30, s29, 2")
    e("v_add_u32 v14, s30, v14")
    e("v_bfe_u32 v15, v2, 1, 3")
    e("v_xor_b32 v14, v14, v15")
    e("v_lshlrev_b32 v3, 7, v3")
    e("v_lshl_add_u32 v3, v14, 4, v3")
    e("v_add_u32 v3, 0x10000, v3")
    for s in range(2):
        e(f"v_xor_b32 v{vVr[s]}, {32*s}, v3")
    e("v_and_b32 v3, 31, v2")
    e("v_lshrrev_b32 v14, 5, v2")
    e("v_lshlrev_b32 v14, 2, v14")
    e("v_sub_u32 v3, v3, v14")
    e("s_sub_u32 s30, s28, s29")
    e("s_lshl_b32 s30, s30, 5")
    e(f"v_add_u32 v{vThr}, s30, v3")
    e("v_mov_b32 v23, 0xff800000")
    e("v_and_b32 v3, 31, v2")
    e("s_lshl_b32 s30, s28, 5")
    e("v_add_u32 v3, s30, v3")
    e("v_lshlrev_b32 v3, 13, v3")
    e("s_lshl_b32 s30, s44, 9")
    e("v_add_u32 v3, s30, v3")
    e("v_lshrrev_b32 v14, 5, v2")
    e("v_lshl_add_u32 v31, v14, 3, v3")
    e("v_lshl_add_u32 v3, v14, 4, v3")
    e("s_lshl_b32 s57, s45, 19")
    e("s_sub_u32 s58, 31, s45")
    e("s_lshl_b32 s58, s58, 19")
    e("s_lshl_b32 s52, s25, 13")
    e("s_add_u32 s53, s52, 0x10000")
    e("s_mov_b32 s50, 0")
    e("s_mov_b32 s51, 0")
    for ops in att_dma(e):
        for o in ops:
            e(o)
    e("s_xor_b32 s52, s52, 0x8000")
    e("s_mov_b32 s48, 1")
    e("s_sub_u32 s50, 1, s46")
    e("s_cmp_lt_u32 s48, s46")
    e("s_cselect_b32 s50, s48, s50")
    for ops in att_dma(e)[:8]:
        for o in ops:
            e(o)
    e("s_xor_b32 s52, s52, 0x8000")
    e("s_xor_b32 s53, s53, 0x8000")
    e("s_mov_b32 s49, 0")
    for blk, sq in ((0, 57), (1, 58)):
        for s in range(16):
            a = blk*64 + 4*s
            e(f"buffer_load_dwordx4 a[{a}:{a+3}], v3, s[60:63], s{sq} offen offset:{32*s}")
    att_init(e)
    e("s_waitcnt vmcnt(0)")
    e("s_barrier")
    for s in range(16):
        r = FR + (s % 4)*4
        e(f"ds_read_b128 v[{r}:{r+3}], v{vKr[s]}")
        e("s_waitcnt lgkmcnt(0)")
        c = "0" if s == 0 else f"v[{SC}:{SC+15}]"
        e(f"v_mfma_f32_32x32x16_bf16 v[{SC}:{SC+15}], v[{r}:{r+3}], a[{4*s}:{4*s+3}], {c}")
    for v in vKr:
        e(f"v_xor_b32 v{v}, 0x8000, v{v}")
    e("s_nop 15")
    e("s_mov_b32 s59, 1")
    e.lab("k3_la")
    e("s_cmp_ge_u32 s59, s46")
    e("s_cbranch_scc1 k3_la_end")
    att_body(e, False, 0)
    e("s_add_u32 s59, s59, 1")
    e("s_branch k3_la")
    e.lab("k3_la_end")
    att_body(e, True, 64)
    att_finalize(e, 57)
    e("s_nop 4")
    att_init(e)
    e("s_mov_b32 s59, 1")
    e.lab("k3_lb")
    e("s_cmp_ge_u32 s59, s47")
    e("s_cbranch_scc1 k3_lb_end")
    att_body(e, False, 64)
    e("s_add_u32 s59, s59, 1")
    e("s_branch k3_lb")
    e.lab("k3_lb_end")
    att_body(e, True, None)
    att_finalize(e, 58)
    e.lab("k3_end")
    e("s_endpgm")


def k4(e):
    kn = "k4_kernel"
    e.l.append(f".p2align 8\n{kn}:")
    common_entry(e)
    e("s_cmp_ge_u32 s2, 224")
    e("s_cbranch_scc1 k4_end")
    e("s_load_dwordx2 s[6:7], s[0:1], 0")
    e("s_load_dwordx2 s[32:33], s[0:1], 40")
    e("s_load_dwordx2 s[34:35], s[0:1], 72")
    e("s_load_dwordx2 s[36:37], s[0:1], 80")
    e("s_and_b32 s26, s2, 31")
    e("s_lshl_b32 s26, s26, 6")
    e("s_lshr_b32 s27, s2, 5")
    e("s_lshl_b32 s27, s27, 6")
    e("s_waitcnt lgkmcnt(0)")
    A1, A2 = 64, 128
    AFR, BFR = 192, 208
    vaE, vaO, vb = 4, 5, 6
    var = [8, 9, 10, 11]
    vbr = [12, 13]
    for r in range(128):
        e(f"v_mov_b32 v{64+r}, 0")
    e("s_lshl_b32 s24, s25, 15")
    e("v_and_b32 v3, 31, v2")
    e("v_lshrrev_b32 v14, 5, v2")
    e("v_bfe_u32 v15, v2, 1, 3")
    e("v_xor_b32 v14, v14, v15")
    e("v_lshlrev_b32 v3, 7, v3")
    e("v_lshl_add_u32 v3, v14, 4, v3")
    e("v_add_u32 v3, s24, v3")
    for s2 in range(4):
        e(f"v_xor_b32 v{var[s2]}, {32*s2}, v3")
    e("v_lshrrev_b32 v3, 5, v2")
    e("v_bfe_u32 v14, v2, 2, 2")
    e("v_lshl_add_u32 v3, v3, 3, v14")
    e("v_lshlrev_b32 v3, 7, v3")
    e("v_bfe_u32 v15, v2, 4, 1")
    e("v_lshl_add_u32 v3, v15, 5, v3")
    e("v_and_b32 v15, 3, v2")
    e("v_lshl_add_u32 v3, v15, 3, v3")
    e("v_add_u32 v3, s24, v3")
    e("v_add_u32 v3, 0x2000, v3")
    e("v_bfe_u32 v15, v2, 3, 1")
    for nb in range(2):
        e(f"v_xor_b32 v16, {nb}, v15")
        e(f"v_lshl_add_u32 v{vbr[nb]}, v16, 6, v3")
    e("v_lshrrev_b32 v3, 3, v2")
    e("v_mul_u32_u24 v3, 896, v3")
    e("v_bfe_u32 v14, v2, 2, 1")
    e("v_bfe_u32 v15, v2, 4, 1")
    e("v_xor_b32 v14, v14, v15")
    e("v_lshl_add_u32 v3, v14, 6, v3")
    e("v_and_b32 v14, 3, v2")
    e("v_lshl_add_u32 v3, v14, 4, v3")
    e("s_lshl_b32 s30, s27, 1")
    e(f"v_add_u32 v{vb}, s30, v3")
    def phase(lda, nsteps, accb, sA, sB):
        e("v_lshrrev_b32 v3, 3, v2")
        e("v_add_u32 v3, s26, v3")
        e(f"s_mov_b32 s31, {lda}")
        e("v_mul_lo_u32 v3, v3, s31")
        e("v_and_b32 v14, 7, v2")
        e("v_lshrrev_b32 v15, 4, v2")
        e("v_xor_b32 v16, v14, v15")
        e(f"v_lshl_add_u32 v{vaE}, v16, 4, v3")
        e("v_add_u32 v15, 4, v15")
        e("v_xor_b32 v16, v14, v15")
        e(f"v_lshl_add_u32 v{vaO}, v16, 4, v3")
        e(f"s_mul_i32 s21, s25, {nsteps*128}")
        e(f"s_mul_i32 s22, s25, {nsteps*64*896}")
        def dma():
            for q in range(8):
                e(f"s_add_u32 m0, s24, {q*1024}")
                e(f"s_add_u32 s23, s21, {q*8*lda}")
                e(f"buffer_load_dwordx4 v{vaE if q%2==0 else vaO}, s[{sA}:{sA+3}], s23 offen lds")
            for q in range(8):
                e(f"s_add_u32 m0, s24, {8192+q*1024}")
                e(f"s_add_u32 s23, s22, {q*8*896}")
                e(f"buffer_load_dwordx4 v{vb}, s[{sB}:{sB+3}], s23 offen lds")
        dma()
        e("s_mov_b32 s20, 0")
        L = e.uid("k4l"); Ls = e.uid("k4s")
        e.lab(L)
        e("s_add_u32 s20, s20, 1")
        e(f"s_cmp_ge_u32 s20, {nsteps}")
        e(f"s_cbranch_scc1 {Ls}")
        e("s_add_u32 s21, s21, 128")
        e(f"s_add_u32 s22, s22, {64*896}")
        e("s_xor_b32 s24, s24, 0x4000")
        dma()
        e("s_waitcnt vmcnt(16)")
        e(f"s_branch {Ls}_b")
        e.lab(Ls)
        e("s_waitcnt vmcnt(0)")
        e.lab(f"{Ls}_b")
        for s2 in range(4):
            bb = s2 % 2
            for mt in range(2):
                r = AFR + bb*8 + mt*4
                e(f"ds_read_b128 v[{r}:{r+3}], v{var[s2]} offset:{mt*4096}")
            for nt in range(2):
                r = BFR + bb*8 + nt*4
                e(f"ds_read_b64_tr_b16 v[{r}:{r+1}], v{vbr[nt]} offset:{16*s2*128}")
                e(f"ds_read_b64_tr_b16 v[{r+2}:{r+3}], v{vbr[nt]} offset:{(16*s2+4)*128}")
            e("s_waitcnt lgkmcnt(0)")
            for mt in range(2):
                for nt in range(2):
                    a = AFR + bb*8 + mt*4; b = BFR + bb*8 + nt*4; d = accb + (mt*2+nt)*16
                    e(f"v_mfma_f32_32x32x16_bf16 v[{d}:{d+15}], v[{b}:{b+3}], v[{a}:{a+3}], v[{d}:{d+15}]")
        for v in var + vbr:
            e(f"v_xor_b32 v{v}, 0x4000, v{v}")
        e(f"s_cmp_lt_u32 s20, {nsteps}")
        e(f"s_cbranch_scc1 {L}")
    srd(e, 8, 4, 2048*4096*2, WS_CTX)
    srd(e, 12, 32, 4096*448*2)
    phase(8192, 16, A1, 8, 12)
    e("s_lshl_b32 s24, s25, 15")
    srd(e, 8, 4, 2048*1792*2, WS_ACT)
    srd(e, 12, 34, 1792*448*2)
    phase(3584, 7, A2, 8, 12)
    e("s_nop 15")
    e("s_lshl_b32 s24, s25, 15")
    e("v_lshlrev_b32 v3, 4, v2")
    e("v_add_u32 v3, s24, v3")
    for t in range(8):
        for k in range(4):
            r = 64 + t*16 + k*4
            e(f"ds_write_b128 v3, v[{r}:{r+3}] offset:{t*4096+k*1024}")
    e("s_waitcnt lgkmcnt(0)")
    e("s_barrier")
    e("v_lshlrev_b32 v3, 4, v2")
    e("s_lshl_b32 s30, s25, 12")
    e("v_add_u32 v3, s30, v3")
    e("v_add_u32 v27, 0x10000, v3")
    for w in range(4):
        for which in range(2):
            for k in range(4):
                r = 64 + (w*2+which)*16 + k*4
                e(f"ds_read_b128 v[{r}:{r+3}], v{3 if w < 2 else 27} offset:{(w%2)*32768 + which*16384 + k*1024}")
    srd(e, 8, 6, 2048*448*2)
    srd(e, 16, 36, 2048*448*2)
    e("v_and_b32 v14, 31, v2")
    e("s_lshr_b32 s30, s25, 1")
    e("s_lshl_b32 s30, s30, 5")
    e("s_add_u32 s30, s30, s26")
    e("v_add_u32 v14, s30, v14")
    e("v_mul_u32_u24 v14, 896, v14")
    e("v_lshrrev_b32 v15, 5, v2")
    e("v_lshl_add_u32 v14, v15, 3, v14")
    e("s_and_b32 s30, s25, 1")
    e("s_lshl_b32 s30, s30, 5")
    e("s_add_u32 s30, s30, s27")
    e("s_lshl_b32 s30, s30, 1")
    e("v_add_u32 v14, s30, v14")
    for j in range(4):
        e(f"buffer_load_dwordx2 v[{16+2*j}:{17+2*j}], v14, s[8:11], 0 offen offset:{j*16}")
    e("s_waitcnt lgkmcnt(0)")
    for i in range(16):
        e(f"v_add_f32 v{64+i}, v{64+i}, v{96+i}")
        e(f"v_add_f32 v{128+i}, v{128+i}, v{160+i}")
        e(f"v_add_f32 v{64+i}, v{64+i}, v{128+i}")
        e(f"v_add_f32 v{80+i}, v{80+i}, v{112+i}")
        e(f"v_add_f32 v{144+i}, v{144+i}, v{176+i}")
        e(f"v_add_f32 v{80+i}, v{80+i}, v{144+i}")
    e("s_mov_b32 s31, 0xffff0000")
    e("s_mov_b32 s44, 0xbfb8aa3b")
    def rnd(r0, r1):
        e(f"v_cvt_pk_bf16_f32 v24, v{r0}, v{r1}")
        e(f"v_lshlrev_b32 v{r0}, 16, v24")
        e(f"v_and_b32 v{r1}, s31, v24")
    e("s_waitcnt vmcnt(0)")
    for i in range(0, 16, 2):
        rnd(64+i, 65+i); rnd(80+i, 81+i)
    for i in range(16):
        e(f"v_mul_f32 v25, s44, v{80+i}")
        e("v_exp_f32 v25, v25")
        e("s_nop 0")
        e("v_add_f32 v25, 1.0, v25")
        e("v_rcp_f32 v25, v25")
        e("s_nop 0")
        e(f"v_mul_f32 v{80+i}, v{80+i}, v25")
    for i in range(0, 16, 2):
        rnd(80+i, 81+i)
    for i in range(16):
        e(f"v_mul_f32 v{64+i}, v{64+i}, v{80+i}")
    for i in range(0, 16, 2):
        rnd(64+i, 65+i)
    for j in range(4):
        for t in range(2):
            xr = 16 + 2*j + t
            i = 4*j + 2*t
            e(f"v_lshlrev_b32 v25, 16, v{xr}")
            e(f"v_and_b32 v26, s31, v{xr}")
            e(f"v_add_f32 v25, v25, v{64+i}")
            e(f"v_add_f32 v26, v26, v{65+i}")
            e(f"v_cvt_pk_bf16_f32 v{xr}, v25, v26")
        e(f"buffer_store_dwordx2 v[{16+2*j}:{17+2*j}], v14, s[16:19], 0 offen offset:{j*16}")
    e.lab("k4_end")
    e("s_endpgm")

def wave_sum(e, v, vout):
    e("s_nop 1")
    for sh in (1, 2, 4, 8):
        e(f"v_add_f32_dpp v{v}, v{v}, v{v} row_shr:{sh} row_mask:0xf bank_mask:0xf")
        e("s_nop 1")
    e(f"v_add_f32_dpp v{v}, v{v}, v{v} row_bcast:15 row_mask:0xa bank_mask:0xf")
    e("s_nop 1")
    e(f"v_add_f32_dpp v{v}, v{v}, v{v} row_bcast:31 row_mask:0xc bank_mask:0xf")
    e("s_nop 1")
    e(f"v_readlane_b32 s42, v{v}, 63")
    e("s_nop 1")
    e(f"v_mov_b32 v{vout}, s42")

def bf16_round(e, v, t):
    e(f"v_cvt_pk_bf16_f32 v{t}, v{v}, v{v}")
    e(f"v_lshlrev_b32 v{v}, 16, v{t}")

def kd(name, vg=256, sg=102, acc=256):
    return f""".amdhsa_kernel {name}
  .amdhsa_next_free_vgpr {vg}
  .amdhsa_next_free_sgpr {sg}
  .amdhsa_accum_offset {acc}
  .amdhsa_group_segment_fixed_size 0
  .amdhsa_kernarg_size 104
  .amdhsa_user_sgpr_count 2
  .amdhsa_user_sgpr_kernarg_segment_ptr 1
  .amdhsa_system_sgpr_workgroup_id_x 1
.end_amdhsa_kernel"""

def main():
    e = E()
    launches = [("k1_kernel", 288, 512, 139264), ("k2_kernel", 184, 512, 139264), ("k3_kernel", 256, 256, 148480), ("k4_kernel", 224, 256, 131072)]
    k1(e)
    k2(e)
    k3(e)
    k4(e)
    hdr = open(f"cdna_kernels/{NAME}.s.ref").read().split("; Override launch")[0]
    out = hdr
    for (k, g, b, l) in launches:
        out += f"; @launch kernel={k} grid=({g},1,1) block=({b},1,1) lds={l}\n"
    out += '.amdgcn_target "amdgcn-amd-amdhsa--gfx950"\n.text\n'
    out += "\n".join(e.l) + "\n"
    out += '.section .rodata,"a"\n'
    for (k, g, b, l) in launches:
        out += ".p2align 6\n" + (kd(k, 512, 102, 256) if k == "k3_kernel" else kd(k)) + "\n"
    open(f"cdna_kernels/{NAME}.s", "w").write(out)

if __name__ == "__main__":
    main()
```

```python
NAME = "recurrent_scan__compressed_kv_cla__dense_activation_mish__prompt"
MB = 1 << 20
WS_XN, WS_Q, WS_K, WS_VT, WS_ACT, WS_CTX = 0, 4*MB, 20*MB, 36*MB, 52*MB, 60*MB

class E:
    def __init__(self):
        self.l = []
        self.n = 0
    def __call__(self, s):
        self.l.append("    " + s)
    def lab(self, s):
        self.l.append(s + ":")
    def uid(self, p="L"):
        self.n += 1
        return f"{p}_{self.n}"
    def c(self, s):
        self.l.append("    ; " + s)

def srd(e, sd, sbase, nbytes, add=0):
    if add:
        e(f"s_add_u32 s{sd}, s{sbase}, {add}")
        e(f"s_addc_u32 s{sd+1}, s{sbase+1}, 0")
    else:
        e(f"s_mov_b32 s{sd}, s{sbase}")
        e(f"s_mov_b32 s{sd+1}, s{sbase+1}")
    e(f"s_mov_b32 s{sd+2}, {nbytes}")
    e(f"s_mov_b32 s{sd+3}, 0x00020000")

ACC = 64
AF = 192
BF = 224
vAe, vAo, vBe, vBo = 4, 5, 6, 7
vAr = [8, 9, 10, 11]
vBr = [12, 13]

def acc(mt, nt):
    return ACC + (mt * 2 + nt) * 16

def gemm_setup(e, lda, ldb):
    e.c("---- gemm setup")
    e("s_and_b32 s28, s25, 1")
    e("s_lshr_b32 s29, s25, 1")
    e("v_lshrrev_b32 v3, 3, v2")
    e(f"s_lshl_b32 s30, s25, 5")
    e("s_add_u32 s30, s30, s26")
    e("v_add_u32 v3, s30, v3")
    e(f"s_mov_b32 s31, {lda}")
    e("v_mul_lo_u32 v3, v3, s31")
    e("v_and_b32 v14, 7, v2")
    e("v_lshrrev_b32 v15, 4, v2")
    e("v_xor_b32 v16, v14, v15")
    e(f"v_lshl_add_u32 v{vAe}, v16, 4, v3")
    e("v_add_u32 v15, 4, v15")
    e("v_xor_b32 v16, v14, v15")
    e(f"v_lshl_add_u32 v{vAo}, v16, 4, v3")
    e("v_lshrrev_b32 v3, 5, v2")
    e("s_lshl_b32 s30, s25, 3")
    e("v_add_u32 v14, s30, v3")
    e(f"s_mov_b32 s31, {ldb}")
    e("v_mul_lo_u32 v14, v14, s31")
    e("s_lshl_b32 s30, s27, 1")
    e("v_add_u32 v14, s30, v14")
    e("v_and_b32 v15, 3, v2")
    e("v_lshl_add_u32 v14, v15, 4, v14")
    e("v_bfe_u32 v15, v2, 2, 3")
    e("v_xor_b32 v16, v15, v3")
    e(f"v_lshl_add_u32 v{vBe}, v16, 6, v14")
    e("v_add_u32 v3, 2, v3")
    e("v_xor_b32 v16, v15, v3")
    e(f"v_lshl_add_u32 v{vBo}, v16, 6, v14")
    e("v_and_b32 v3, 31, v2")
    e("v_lshrrev_b32 v14, 5, v2")
    e("v_bfe_u32 v15, v2, 1, 3")
    e("v_xor_b32 v14, v14, v15")
    e("v_lshlrev_b32 v3, 7, v3")
    e("v_lshl_add_u32 v3, v14, 4, v3")
    e("s_lshl_b32 s30, s28, 14")
    e("v_add_u32 v3, s30, v3")
    for s in range(4):
        e(f"v_xor_b32 v{vAr[s]}, {32*s}, v3")
    e("v_lshrrev_b32 v3, 5, v2")
    e("v_bfe_u32 v14, v2, 2, 2")
    e("v_lshl_add_u32 v3, v3, 3, v14")
    e("v_lshlrev_b32 v3, 9, v3")
    e("v_bfe_u32 v15, v2, 4, 1")
    e("v_lshl_add_u32 v3, v15, 5, v3")
    e("v_and_b32 v15, 3, v2")
    e("v_lshl_add_u32 v3, v15, 3, v3")
    e("v_add_u32 v3, 0x8000, v3")
    for b in range(2):
        e(f"s_lshl_b32 s30, s29, 1")
        e(f"s_add_u32 s30, s30, {b}")
        e("s_lshr_b32 s31, s30, 2")
        e("s_lshl_b32 s31, s31, 8")
        e("s_and_b32 s30, s30, 3")
        e("v_xor_b32 v15, s30, v14")
        e("v_lshl_add_u32 v15, v15, 6, v3")
        e(f"v_add_u32 v{vBr[b]}, s31, v15")

def gemm_dma(e, lda, ldb):
    for q in range(4):
        e(f"s_add_u32 m0, s24, {q*1024}")
        e(f"s_add_u32 s23, s21, {q*8*lda}")
        e(f"buffer_load_dwordx4 v{vAe if q%2==0 else vAo}, s[8:11], s23 offen lds")
    for q in range(4):
        e(f"s_add_u32 m0, s24, {32768+q*1024}")
        e(f"s_add_u32 s23, s22, {q*2*ldb}")
        e(f"buffer_load_dwordx4 v{vBe if q%2==0 else vBo}, s[12:15], s23 offen lds")

def gemm_reads(e, s, buf):
    for mt in range(4):
        r = AF + buf*16 + mt*4
        e(f"ds_read_b128 v[{r}:{r+3}], v{vAr[s]} offset:{mt*4096}")
    for nt in range(2):
        r = BF + buf*8 + nt*4
        e(f"ds_read_b64_tr_b16 v[{r}:{r+1}], v{vBr[nt]} offset:{(16*s)*512}")
        e(f"ds_read_b64_tr_b16 v[{r+2}:{r+3}], v{vBr[nt]} offset:{(16*s+4)*512}")

def gemm_mfmas(e, buf, swap):
    for mt in range(4):
        for nt in range(2):
            a = AF + buf*16 + mt*4
            b = BF + buf*8 + nt*4
            d = acc(mt, nt)
            if swap:
                e(f"v_mfma_f32_32x32x16_bf16 v[{d}:{d+15}], v[{a}:{a+3}], v[{b}:{b+3}], v[{d}:{d+15}]")
            else:
                e(f"v_mfma_f32_32x32x16_bf16 v[{d}:{d+15}], v[{b}:{b+3}], v[{a}:{a+3}], v[{d}:{d+15}]")

def gemm_main(e, lda, ldb, nk, swap):
    e.c("---- gemm main loop")
    for r in range(128):
        e(f"v_mov_b32 v{ACC+r}, 0")
    e("s_mov_b32 s21, 0")
    e("s_mov_b32 s22, 0")
    e("s_lshl_b32 s24, s25, 12")
    gemm_dma(e, lda, ldb)
    e("s_mov_b32 s20, 0")
    L = e.uid("gk")
    Ls = e.uid("gs")
    e.lab(L)
    e("s_waitcnt vmcnt(0)")
    e("s_barrier")
    gemm_reads(e, 0, 0)
    e("s_add_u32 s20, s20, 1")
    e(f"s_cmp_ge_u32 s20, {nk}")
    e(f"s_cbranch_scc1 {Ls}")
    e("s_add_u32 s21, s21, 128")
    e(f"s_add_u32 s22, s22, {64*ldb}")
    e("s_xor_b32 s24, s24, 0x10000")
    gemm_dma(e, lda, ldb)
    e.lab(Ls)
    for s in range(4):
        if s < 3:
            gemm_reads(e, s+1, (s+1) % 2)
            e("s_waitcnt lgkmcnt(8)")
        else:
            e("s_waitcnt lgkmcnt(0)")
        gemm_mfmas(e, s % 2, swap)
    for v in vAr + vBr:
        e(f"v_xor_b32 v{v}, 0x10000, v{v}")
    e(f"s_cmp_lt_u32 s20, {nk}")
    e(f"s_cbranch_scc1 {L}")
    e("s_nop 15")
    e("s_barrier")

def gemm_epilogue_store(e, swap, ldo, pre=None):
    e.c("---- epilogue")
    ST = 528
    e("v_and_b32 v3, 31, v2")
    e("v_lshrrev_b32 v14, 5, v2")
    if not swap:
        e("s_lshl_b32 s30, s28, 7")
        e("v_add_u32 v3, s30, v3")
        e(f"v_mul_u32_u24 v3, {ST}, v3")
        e("v_lshl_add_u32 v3, v14, 3, v3")
        e("s_lshl_b32 s30, s29, 7")
        e("v_add_u32 v3, s30, v3")
    else:
        e("s_lshl_b32 s30, s29, 6")
        e("v_add_u32 v3, s30, v3")
        e(f"v_mul_u32_u24 v3, {ST}, v3")
        e("v_lshl_add_u32 v3, v14, 4, v3")
        e("s_lshl_b32 s30, s28, 8")
        e("v_add_u32 v3, s30, v3")
    for mt in range(4):
        for nt in range(2):
            d = acc(mt, nt)
            if pre:
                pre(e, mt, nt)
            for j in range(4):
                e(f"v_cvt_pk_bf16_f32 v{16+2*(j%2)}, v{d+4*j}, v{d+4*j+1}")
                e(f"v_cvt_pk_bf16_f32 v{17+2*(j%2)}, v{d+4*j+2}, v{d+4*j+3}")
                if not swap:
                    off = mt*32*ST + nt*64 + j*16
                else:
                    off = nt*32*ST + mt*64 + (j >> 1)*32 + (j & 1)*8
                e(f"ds_write_b64 v3, v[{16+2*(j%2)}:{17+2*(j%2)}] offset:{off}")
    e("s_waitcnt lgkmcnt(0)")
    e("s_barrier")
    e("v_lshrrev_b32 v3, 5, v2")
    e("s_lshl_b32 s30, s25, 5")
    e("v_add_u32 v3, s30, v3")
    e("v_and_b32 v14, 31, v2")
    e(f"v_mul_u32_u24 v15, {ST}, v3")
    e("v_lshl_add_u32 v15, v14, 4, v15")
    r0, c0 = ("s26", "s27") if not swap else ("s27", "s26")
    e(f"v_add_u32 v3, {r0}, v3")
    e(f"s_mov_b32 s31, {ldo}")
    e("v_mul_lo_u32 v3, v3, s31")
    e("v_lshl_add_u32 v3, v14, 4, v3")
    e(f"s_lshl_b32 s30, {c0}, 1")
    e("v_add_u32 v3, s30, v3")
    for q in range(16):
        r = 20 + (q % 4) * 4
        e(f"ds_read_b128 v[{r}:{r+3}], v15 offset:{q*2*ST}")
        if q % 4 == 3:
            for qq in range(q-3, q+1):
                rr = 20 + (qq % 4) * 4
                e(f"s_waitcnt lgkmcnt({q-qq})")
                e(f"s_mov_b32 s30, {qq*2*ldo}")
                e(f"buffer_store_dwordx4 v[{rr}:{rr+3}], v3, s[16:19], s30 offen")
            e("s_nop 1")

def common_entry(e):
    e("s_load_dwordx2 s[4:5], s[0:1], 96")
    e("v_lshrrev_b32 v1, 6, v0")
    e("v_and_b32 v2, 63, v0")
    e("s_nop 0")
    e("v_readfirstlane_b32 s25, v1")

def k1(e):
    kn = "k1_kernel"
    e.l.append(f".p2align 8\n{kn}:")
    common_entry(e)
    e("s_cmp_ge_u32 s2, 288")
    e("s_cbranch_scc1 k1_end")
    e("s_cmp_ge_u32 s2, 256")
    e("s_cbranch_scc1 k1_ln")
    e("s_load_dwordx2 s[6:7], s[0:1], 8")
    e("s_load_dwordx4 s[32:35], s[0:1], 24")
    e("s_and_b32 s30, s2, 7")
    e("s_lshr_b32 s31, s2, 3")
    e("s_lshl_b32 s30, s30, 2")
    e("s_and_b32 s36, s31, 3")
    e("s_add_u32 s36, s36, s30")
    e("s_lshr_b32 s26, s31, 2")
    e("s_lshl_b32 s26, s26, 8")
    e("s_and_b32 s27, s36, 15")
    e("s_lshl_b32 s27, s27, 8")
    e("s_waitcnt lgkmcnt(0)")
    srd(e, 8, 6, 2048*1024*2)
    e("s_cmp_ge_u32 s36, 16")
    e("s_cselect_b32 s32, s34, s32")
    e("s_cselect_b32 s33, s35, s33")
    srd(e, 12, 32, 1024*4096*2)
    e("s_cbranch_scc1 k1_v")
    srd(e, 16, 4, 2048*4096*2, WS_K)
    gemm_setup(e, 2048, 8192)
    gemm_main(e, 2048, 8192, 16, False)
    gemm_epilogue_store(e, False, 8192)
    e("s_endpgm")
    e.lab("k1_v")
    srd(e, 16, 4, 2048*4096*2, WS_VT)
    gemm_setup(e, 2048, 8192)
    gemm_main(e, 2048, 8192, 16, True)
    gemm_epilogue_store(e, True, 4096)
    e("s_endpgm")
    e.lab("k1_ln")
    e("s_load_dwordx2 s[6:7], s[0:1], 0")
    e("s_sub_u32 s30, s2, 256")
    e("s_lshl_b32 s30, s30, 3")
    e("s_add_u32 s30, s30, s25")
    e("s_lshl_b32 s30, s30, 3")
    e("s_mul_i32 s30, s30, 896")
    e("s_waitcnt lgkmcnt(0)")
    srd(e, 8, 6, 2048*448*2)
    srd(e, 16, 4, 2048*448*2, WS_XN)
    e("v_lshlrev_b32 v3, 4, v2")
    e("v_cmp_gt_u32 vcc, 56, v2")
    e("s_and_saveexec_b64 s[40:41], vcc")
    for r in range(8):
        e(f"s_add_u32 s43, s30, {r*896}")
        e(f"buffer_load_dwordx4 v[{64+4*r}:{67+4*r}], v3, s[8:11], s43 offen")
    e("s_mov_b64 exec, s[40:41]")
    e("s_mov_b32 s31, 0xffff0000")
    for r in range(8):
        b = 64 + 4*r
        e(f"s_waitcnt vmcnt({7-r})")
        for i in range(4):
            e(f"v_lshlrev_b32 v{16+2*i}, 16, v{b+i}")
            e(f"v_and_b32 v{17+2*i}, s31, v{b+i}")
        e("s_nop 0")
        for i in range(8):
            e(f"v_cndmask_b32 v{16+i}, 0, v{16+i}, vcc")
        e("v_add_f32 v24, v16, v17")
        for i in range(2, 8):
            e(f"v_add_f32 v24, v24, v{16+i}")
        wave_sum(e, 24, 25)
        e("v_mul_f32 v25, 0x3b124925, v25")
        for i in range(8):
            e(f"v_sub_f32 v{32+i}, v{16+i}, v25")
            e(f"v_cndmask_b32 v{32+i}, 0, v{32+i}, vcc")
        e("v_mul_f32 v24, v32, v32")
        for i in range(1, 8):
            e(f"v_fmac_f32 v24, v{32+i}, v{32+i}")
        wave_sum(e, 24, 26)
        e("v_mul_f32 v26, 0x3b124925, v26")
        bf16_round(e, 25, 27)
        bf16_round(e, 26, 27)
        e("v_add_f32 v26, 0x3727c5ac, v26")
        bf16_round(e, 26, 27)
        e("v_sqrt_f32 v26, v26")
        e("s_nop 0")
        bf16_round(e, 26, 27)
        e("v_rcp_f32 v28, v26")
        e("s_nop 0")
        for i in range(8):
            e(f"v_sub_f32 v{32+i}, v{16+i}, v25")
        for i in range(4):
            e(f"v_cvt_pk_bf16_f32 v{40+i}, v{32+2*i}, v{33+2*i}")
        for i in range(4):
            e(f"v_lshlrev_b32 v{32+2*i}, 16, v{40+i}")
            e(f"v_and_b32 v{33+i*2}, s31, v{40+i}")
        for i in range(8):
            e(f"v_mul_f32 v{48+i}, v{32+i}, v28")
            e(f"v_fma_f32 v{56}, -v{48+i}, v26, v{32+i}")
            e(f"v_fmac_f32 v{48+i}, v56, v28")
        for i in range(4):
            e(f"v_cvt_pk_bf16_f32 v{40+i}, v{48+2*i}, v{49+2*i}")
        e("s_and_saveexec_b64 s[40:41], vcc")
        e(f"s_add_u32 s43, s30, {r*896}")
        e(f"buffer_store_dwordx4 v[40:43], v3, s[16:19], s43 offen")
        e("s_mov_b64 exec, s[40:41]")
        e("s_nop 1")
    e.lab("k1_end")
    e("s_endpgm")


def k2(e):
    kn = "k2_kernel"
    e.l.append(f".p2align 8\n{kn}:")
    common_entry(e)
    e("s_cmp_ge_u32 s2, 184")
    e("s_cbranch_scc1 k2_end")
    e("s_load_dwordx2 s[32:33], s[0:1], 16")
    e("s_load_dwordx4 s[36:39], s[0:1], 56")
    e("s_and_b32 s26, s2, 7")
    e("s_lshl_b32 s26, s26, 8")
    e("s_lshr_b32 s31, s2, 3")
    e("s_waitcnt lgkmcnt(0)")
    srd(e, 8, 4, 2048*448*2, WS_XN)
    e("s_cmp_ge_u32 s31, 16")
    e("s_cbranch_scc1 k2_h")
    e("s_lshl_b32 s27, s31, 8")
    srd(e, 12, 32, 448*4096*2)
    srd(e, 16, 4, 2048*4096*2, WS_Q)
    gemm_setup(e, 896, 8192)
    gemm_main(e, 896, 8192, 7, False)
    gemm_epilogue_store(e, False, 8192)
    e("s_endpgm")
    e.lab("k2_h")
    e("s_sub_u32 s31, s31, 16")
    e("s_lshl_b32 s27, s31, 8")
    srd(e, 12, 36, 448*1792*2)
    srd(e, 16, 4, 2048*1792*2, WS_ACT)
    gemm_setup(e, 896, 3584)
    gemm_main(e, 896, 3584, 7, False)
    srd(e, 44, 38, 1792*2)
    e("v_lshrrev_b32 v3, 5, v2")
    e("v_lshlrev_b32 v3, 3, v3")
    e("s_lshl_b32 s30, s29, 6")
    e("s_add_u32 s30, s30, s27")
    e("s_lshl_b32 s30, s30, 1")
    e("v_add_u32 v3, s30, v3")
    for nt in range(2):
        for j in range(4):
            r = 192 + (nt*4+j)*4
            e(f"buffer_load_dwordx2 v[{r}:{r+1}], v3, s[44:47], 0 offen offset:{nt*64+j*16}")
    e("s_waitcnt vmcnt(0)")
    e("s_mov_b32 s31, 0xffff0000")
    for nt in range(2):
        for j in range(4):
            r = 192 + (nt*4+j)*4
            e(f"v_lshlrev_b32 v{r+2}, 16, v{r+1}")
            e(f"v_and_b32 v{r+3}, s31, v{r+1}")
            e(f"v_and_b32 v{r+1}, s31, v{r}")
            e(f"v_lshlrev_b32 v{r}, 16, v{r}")
    e("s_mov_b32 s44, 0x3fb8aa3b")
    e("s_mov_b32 s45, 0x41f00000")
    def pre(e, mt, nt):
        d = acc(mt, nt)
        for i in range(0, 16, 2):
            e(f"v_cvt_pk_bf16_f32 v240, v{d+i}, v{d+i+1}")
            e(f"v_lshlrev_b32 v{d+i}, 16, v240")
            e(f"v_and_b32 v{d+i+1}, s31, v240")
        for i in range(16):
            e(f"v_add_f32 v{d+i}, v{d+i}, v{192+(nt*4+i//4)*4+i%4}")
        for i in range(0, 16, 2):
            e(f"v_cvt_pk_bf16_f32 v240, v{d+i}, v{d+i+1}")
            e(f"v_lshlrev_b32 v{d+i}, 16, v240")
            e(f"v_and_b32 v{d+i+1}, s31, v240")
        for i in range(16):
            e(f"v_min_f32 v241, s45, v{d+i}")
            e(f"v_mul_f32 v241, s44, v241")
            e(f"v_exp_f32 v241, v241")
            e("s_nop 0")
            e(f"v_add_f32 v242, 2.0, v241")
            e(f"v_mul_f32 v242, v242, v241")
            e(f"v_add_f32 v243, 2.0, v242")
            e(f"v_rcp_f32 v243, v243")
            e("s_nop 0")
            e(f"v_mul_f32 v242, v242, v243")
            e(f"v_mul_f32 v{d+i}, v{d+i}, v242")
    gemm_epilogue_store(e, False, 3584, pre)
    e.lab("k2_end")
    e("s_endpgm")


O0 = 128
SC, SN = 96, 112
PF = 96
FR = 64
vKd = list(range(32, 40))
vVd = [40, 41]
vKr = list(range(42, 58))
vVr = [58, 59]
vM, vL, vThr = 20, 21, 22
MRG = 131072
C_SCALE = 0x3db8aa3b

def att_dma(e):
    ops = []
    e("s_lshl_b32 s54, s50, 19")
    e("s_lshl_b32 s55, s51, 7")
    for q in range(8):
        ops.append([f"s_add_u32 m0, s52, {q*1024}", f"s_add_u32 s23, s54, {q*2*8192}",
                    f"buffer_load_dwordx4 v{vKd[q]}, s[8:11], s23 offen lds"])
    for q in range(8):
        ops.append([f"s_add_u32 m0, s53, {q*1024}", f"s_add_u32 s23, s55, {q*8*4096}",
                    f"buffer_load_dwordx4 v{vVd[q%2]}, s[12:15], s23 offen lds"])
    return ops

def att_next_idx(e):
    if False:
        e.c("unused:" + """
    # flat index n -> tile = n < TA ? n : n - TA ; clamp n <= 32
    """.strip().splitlines()[0])
    for (sf, st) in ((48, 50), (49, 51)):
        e(f"s_add_u32 s{sf}, s{sf}, 1")
        e(f"s_min_u32 s{sf}, s{sf}, 32")
        e(f"s_sub_u32 s{st}, s{sf}, s46")
        e(f"s_cmp_lt_u32 s{sf}, s46")
        e(f"s_cselect_b32 s{st}, s{sf}, s{st}")

def softmax_ops(e, mask):
    ops = []
    if mask:
        for r in range(16):
            kk = 8*(r//4) + (r % 4)
            ops.append(f"v_cmp_le_i32 vcc, {kk}, v{vThr}")
            ops.append(f"v_cndmask_b32 v{SC+r}, v23, v{SC+r}, vcc")
    ops.append(f"v_max3_f32 v24, v{SC}, v{SC+1}, v{SC+2}")
    ops.append(f"v_max3_f32 v25, v{SC+3}, v{SC+4}, v{SC+5}")
    ops.append(f"v_max3_f32 v26, v{SC+6}, v{SC+7}, v{SC+8}")
    ops.append(f"v_max3_f32 v27, v{SC+9}, v{SC+10}, v{SC+11}")
    ops.append(f"v_max3_f32 v24, v24, v{SC+12}, v{SC+13}")
    ops.append(f"v_max3_f32 v25, v25, v{SC+14}, v{SC+15}")
    ops.append(f"v_max3_f32 v24, v24, v25, v26")
    ops.append(f"v_max_f32 v24, v24, v27")
    ops.append("v_mov_b32 v25, v24")
    ops.append("s_nop 1")
    ops.append("v_permlane32_swap_b32 v24, v25")
    ops.append("v_max_f32 v24, v24, v25")
    ops.append(f"v_mul_f32 v24, s56, v24")
    ops.append(f"v_add_f32 v25, 8.0, v{vM}".replace("8.0", "0x41000000"))
    ops.append("v_cmp_gt_f32 vcc, v24, v25")
    ops.append("RESCALE")
    for r in range(16):
        ops.append(f"v_fma_f32 v{SC+r}, v{SC+r}, s56, -v{vM}")
        ops.append(f"v_exp_f32 v{SC+r}, v{SC+r}")
    for r in range(16):
        ops.append(f"v_add_f32 v{vL}, v{vL}, v{SC+r}")
    for i in range(8):
        ops.append(f"v_cvt_pk_bf16_f32 v{PF+i}, v{SC+2*i}, v{SC+2*i+1}")
    return ops

def emit_rescale(e):
    L = e.uid("nors")
    e(f"s_cbranch_vccz {L}")
    e(f"v_max_f32 v24, v24, v{vM}")
    e(f"v_sub_f32 v25, v{vM}, v24")
    e("v_exp_f32 v25, v25")
    e(f"v_mov_b32 v{vM}, v24")
    e(f"v_mul_f32 v{vL}, v{vL}, v25")
    for r in range(128):
        e(f"v_mul_f32 v{O0+r}, v25, v{O0+r}")
    e.lab(L)

def att_body(e, mask, nextQ):
    e("s_waitcnt vmcnt(0)")
    e("s_barrier")
    att_next_idx(e)
    dma = att_dma(e)
    import os
    if os.environ.get("X_NODMA"): dma = []
    sm = softmax_ops(e, mask)
    if os.environ.get("X_NOSM"): sm = []
    out = 0
    def flush_some(n):
        for _ in range(n):
            if sm:
                o = sm.pop(0)
                if o == "RESCALE":
                    emit_rescale(e)
                else:
                    e(o)
    if nextQ is not None:
        D = 7
        for s in range(D):
            r = FR + (s % 8)*4
            e(f"ds_read_b128 v[{r}:{r+3}], v{vKr[s]}")
        for s in range(16):
            if s + D < 16:
                r = FR + ((s+D) % 8)*4
                if not os.environ.get("X_NOKR"): e(f"ds_read_b128 v[{r}:{r+3}], v{vKr[s+D]}")
                e(f"s_waitcnt lgkmcnt({D})")
            else:
                e(f"s_waitcnt lgkmcnt({15-s})")
            r = FR + (s % 8)*4
            q = nextQ + 4*s
            c = "0" if s == 0 else f"v[{SN}:{SN+15}]"
            if not os.environ.get("X_NOQK"):
                e(f"v_mfma_f32_32x32x16_bf16 v[{SN}:{SN+15}], v[{r}:{r+3}], a[{q}:{q+3}], {c}")
            flush_some(6)
            if dma:
                for o in dma.pop(0):
                    e(o)
    while sm:
        flush_some(1)
    while dma:
        for o in dma.pop(0):
            e(o)
    seq = [(dt, s) for dt in range(8) for s in range(2)]
    D = 7
    for i in range(D):
        dt, s = seq[i]
        r = FR + (i % 8)*4
        e(f"ds_read_b128 v[{r}:{r+3}], v{vVr[s]} offset:{dt*4096}")
    for i in range(16):
        if i + D < 16:
            dt, s = seq[i+D]
            r = FR + ((i+D) % 8)*4
            if not os.environ.get("X_NOVR"): e(f"ds_read_b128 v[{r}:{r+3}], v{vVr[s]} offset:{dt*4096}")
            e(f"s_waitcnt lgkmcnt({D})")
        else:
            e(f"s_waitcnt lgkmcnt({15-i})")
        dt, s = seq[i]
        r = FR + (i % 8)*4
        o = O0 + dt*16
        if not os.environ.get("X_NOPV"):
            e(f"v_mfma_f32_32x32x16_bf16 v[{o}:{o+15}], v[{r}:{r+3}], v[{PF+4*s}:{PF+4*s+3}], v[{o}:{o+15}]")
    for v in vKr + vVr:
        e(f"v_xor_b32 v{v}, 0x8000, v{v}")
    e("s_xor_b32 s52, s52, 0x8000")
    e("s_xor_b32 s53, s53, 0x8000")
    if nextQ is not None:
        for r in range(16):
            e(f"v_mov_b32 v{SC+r}, v{SN+r}")

def att_finalize(e, sq):
    e("s_nop 15")
    e(f"v_mov_b32 v24, v{vL}")
    e(f"v_mov_b32 v25, v{vL}")
    e("s_nop 1")
    e("v_permlane32_swap_b32 v24, v25")
    e(f"v_add_f32 v{vL}, v24, v25")
    e("v_lshlrev_b32 v26, 4, v2")
    e("s_lshl_b32 s30, s28, 13")
    e(f"v_add_u32 v26, s30, v26")
    e(f"v_add_u32 v26, {MRG}, v26")
    e("v_lshlrev_b32 v27, 3, v2")
    e("s_lshl_b32 s30, s28, 9")
    e("v_add_u32 v27, s30, v27")
    e(f"v_add_u32 v27, {MRG+16384}, v27")
    Lw = e.uid("fw"); Le = e.uid("fe")
    for u in range(4):
        e("s_cmp_eq_u32 s29, 0")
        e(f"s_cbranch_scc1 {Lw}_{u}")
        if u == 0:
            e(f"ds_write_b64 v27, v[{vM}:{vL}]")
        for k in range(8):
            r = O0 + u*32 + k*4
            e(f"ds_write_b128 v26, v[{r}:{r+3}] offset:{k*1024}")
        e("s_waitcnt lgkmcnt(0)")
        e("s_barrier")
        e("s_barrier")
        e(f"s_branch {Le}_{u}")
        e.lab(f"{Lw}_{u}")
        e("s_barrier")
        if u == 0:
            e(f"ds_read_b64 v[28:29], v27")
        for k in range(8):
            e(f"ds_read_b128 v[{FR+0}:{FR+3}], v26 offset:{k*1024}") if False else None
        for k in range(8):
            e(f"ds_read_b128 v[{64+k*4}:{64+k*4+3}], v26 offset:{k*1024}")
        e("s_waitcnt lgkmcnt(0)")
        e("s_barrier")
        if u == 0:
            e(f"v_max_f32 v30, v{vM}, v28")
            e(f"v_sub_f32 v24, v{vM}, v30")
            e(f"v_sub_f32 v25, v28, v30")
            e("v_exp_f32 v24, v24")
            e("v_exp_f32 v25, v25")
            e("s_nop 0")
            e(f"v_mul_f32 v30, v{vL}, v24")
            e("v_fmac_f32 v30, v29, v25")
            e("v_rcp_f32 v30, v30")
            e("s_nop 0")
            e("v_mul_f32 v24, v24, v30")
            e("v_mul_f32 v25, v25, v30")
        for k in range(32):
            r = O0 + u*32 + k
            e(f"v_mul_f32 v{r}, v24, v{r}")
            e(f"v_fmac_f32 v{r}, v25, v{64+k}")
        for k in range(8):
            r = O0 + u*32 + k*4
            dt = u*2 + k//4
            j = k % 4
            e(f"v_cvt_pk_bf16_f32 v{r}, v{r}, v{r+1}")
            e(f"v_cvt_pk_bf16_f32 v{r+1}, v{r+2}, v{r+3}")
            e(f"ds_write_b64 v60, v[{r}:{r+1}] offset:{(k//4)*64+j*16}")
        e("s_waitcnt lgkmcnt(0)")
        for k in range(4):
            e(f"ds_read_b128 v[{64+4*k}:{67+4*k}], v61 offset:{k*8*144}")
        for k in range(4):
            e(f"s_waitcnt lgkmcnt({3-k})")
            e(f"s_add_u32 s30, s{sq}, {k*8*8192}")
            e(f"buffer_store_dwordx4 v[{64+4*k}:{67+4*k}], v62, s[16:19], s30 offen offset:{u*128}")
        e.lab(f"{Le}_{u}")

def att_init(e):
    e(f"v_mov_b32 v{vM}, 0xf149f2ca")
    e(f"v_mov_b32 v{vL}, 0")
    for r in range(128):
        e(f"v_mov_b32 v{O0+r}, 0")

def k3(e):
    kn = "k3_kernel"
    e.l.append(f".p2align 8\n{kn}:")
    common_entry(e)
    e("s_cmp_ge_u32 s2, 256")
    e("s_cbranch_scc1 k3_end")
    e("s_and_b32 s30, s2, 7")
    e("s_lshl_b32 s30, s30, 1")
    e("s_bfe_u32 s31, s2, 0x10003")
    e("s_add_u32 s44, s30, s31")
    e("s_lshr_b32 s45, s2, 4")
    e("s_add_u32 s46, s45, 1")
    e("s_sub_u32 s47, 32, s45")
    e("s_and_b32 s28, s25, 1")
    e("s_lshr_b32 s29, s25, 1")
    e("s_waitcnt lgkmcnt(0)")
    srd(e, 8, 4, 2048*4096*2, WS_K)
    srd(e, 12, 4, 2048*4096*2, WS_VT)
    srd(e, 16, 4, 2048*4096*2, WS_CTX)
    srd(e, 60, 4, 2048*4096*2, WS_Q)
    e(f"s_mov_b32 s56, {C_SCALE}")
    e("v_lshrrev_b32 v3, 5, v2")
    e("v_and_b32 v14, 31, v2")
    e("v_xor_b32 v14, v14, v3")
    e("s_lshl_b32 s30, s25, 4")
    e("v_add_u32 v3, s30, v3")
    e("v_lshlrev_b32 v3, 13, v3")
    e("v_lshl_add_u32 v3, v14, 4, v3")
    e("s_lshl_b32 s30, s44, 9")
    e("v_add_u32 v3, s30, v3")
    for q in range(8):
        e(f"v_xor_b32 v{vKd[q]}, {q*32}, v3")
    e("v_lshrrev_b32 v3, 3, v2")
    e("s_lshl_b32 s30, s25, 6")
    e("s_lshl_b32 s31, s44, 8")
    e("s_add_u32 s30, s30, s31")
    e("v_add_u32 v3, s30, v3")
    e("v_lshlrev_b32 v3, 12, v3")
    e("v_and_b32 v14, 7, v2")
    e("v_lshrrev_b32 v15, 4, v2")
    e("v_xor_b32 v16, v14, v15")
    e(f"v_lshl_add_u32 v{vVd[0]}, v16, 4, v3")
    e("v_add_u32 v15, 4, v15")
    e("v_xor_b32 v16, v14, v15")
    e(f"v_lshl_add_u32 v{vVd[1]}, v16, 4, v3")
    e("v_and_b32 v3, 31, v2")
    e("v_lshrrev_b32 v14, 5, v2")
    e("v_and_b32 v15, 15, v2")
    e("v_xor_b32 v14, v14, v15")
    e("s_lshl_b32 s30, s29, 5")
    e("v_add_u32 v3, s30, v3")
    e("v_lshlrev_b32 v3, 9, v3")
    e("v_lshl_add_u32 v3, v14, 4, v3")
    for s in range(16):
        e(f"v_xor_b32 v{vKr[s]}, {32*s}, v3")
    e("v_and_b32 v3, 31, v2")
    e("v_lshrrev_b32 v14, 5, v2")
    e("s_lshl_b32 s30, s29, 2")
    e("v_add_u32 v14, s30, v14")
    e("v_bfe_u32 v15, v2, 1, 3")
    e("v_xor_b32 v14, v14, v15")
    e("v_lshlrev_b32 v3, 7, v3")
    e("v_lshl_add_u32 v3, v14, 4, v3")
    e("v_add_u32 v3, 0x10000, v3")
    for s in range(2):
        e(f"v_xor_b32 v{vVr[s]}, {32*s}, v3")
    e("v_and_b32 v3, 31, v2")
    e("v_lshrrev_b32 v14, 5, v2")
    e("v_lshlrev_b32 v14, 2, v14")
    e("v_sub_u32 v3, v3, v14")
    e("s_sub_u32 s30, s28, s29")
    e("s_lshl_b32 s30, s30, 5")
    e(f"v_add_u32 v{vThr}, s30, v3")
    e("v_mov_b32 v23, 0xff800000")
    e("v_and_b32 v3, 31, v2")
    e("s_lshl_b32 s30, s28, 5")
    e("v_add_u32 v3, s30, v3")
    e("v_lshlrev_b32 v3, 13, v3")
    e("s_lshl_b32 s30, s44, 9")
    e("v_add_u32 v3, s30, v3")
    e("v_lshrrev_b32 v14, 5, v2")
    e("v_lshl_add_u32 v31, v14, 3, v3")
    e("v_and_b32 v60, 31, v2")
    e("v_mul_u32_u24 v60, 144, v60")
    e("v_lshl_add_u32 v60, v14, 3, v60")
    e("s_mul_i32 s30, s28, 4608")
    e(f"s_add_u32 s30, s30, {MRG+17408}")
    e("v_add_u32 v60, s30, v60")
    e("v_lshrrev_b32 v61, 3, v2")
    e("v_lshl_add_u32 v62, s28, 5, v61")
    e("v_lshlrev_b32 v62, 13, v62")
    e("v_mul_u32_u24 v61, 144, v61")
    e("v_and_b32 v63, 7, v2")
    e("v_lshl_add_u32 v61, v63, 4, v61")
    e("v_add_u32 v61, s30, v61")
    e("v_lshl_add_u32 v62, v63, 4, v62")
    e("s_lshl_b32 s30, s44, 9")
    e("v_add_u32 v62, s30, v62")
    e("v_lshl_add_u32 v3, v14, 4, v3")
    e("s_lshl_b32 s57, s45, 19")
    e("s_sub_u32 s58, 31, s45")
    e("s_lshl_b32 s58, s58, 19")
    e("s_lshl_b32 s52, s25, 13")
    e("s_add_u32 s53, s52, 0x10000")
    e("s_mov_b32 s50, 0")
    e("s_mov_b32 s51, 0")
    for ops in att_dma(e):
        for o in ops:
            e(o)
    e("s_xor_b32 s52, s52, 0x8000")
    e("s_mov_b32 s48, 1")
    e("s_sub_u32 s50, 1, s46")
    e("s_cmp_lt_u32 s48, s46")
    e("s_cselect_b32 s50, s48, s50")
    for ops in att_dma(e)[:8]:
        for o in ops:
            e(o)
    e("s_xor_b32 s52, s52, 0x8000")
    e("s_xor_b32 s53, s53, 0x8000")
    e("s_mov_b32 s49, 0")
    for blk, sq in ((0, 57), (1, 58)):
        for s in range(16):
            a = blk*64 + 4*s
            e(f"buffer_load_dwordx4 a[{a}:{a+3}], v3, s[60:63], s{sq} offen offset:{32*s}")
    att_init(e)
    e("s_waitcnt vmcnt(0)")
    e("s_barrier")
    for s in range(16):
        r = FR + (s % 4)*4
        e(f"ds_read_b128 v[{r}:{r+3}], v{vKr[s]}")
        e("s_waitcnt lgkmcnt(0)")
        c = "0" if s == 0 else f"v[{SC}:{SC+15}]"
        e(f"v_mfma_f32_32x32x16_bf16 v[{SC}:{SC+15}], v[{r}:{r+3}], a[{4*s}:{4*s+3}], {c}")
    for v in vKr:
        e(f"v_xor_b32 v{v}, 0x8000, v{v}")
    e("s_nop 15")
    e("s_mov_b32 s59, 1")
    e.lab("k3_la")
    e("s_cmp_ge_u32 s59, s46")
    e("s_cbranch_scc1 k3_la_end")
    att_body(e, False, 0)
    e("s_add_u32 s59, s59, 1")
    e("s_branch k3_la")
    e.lab("k3_la_end")
    att_body(e, True, 64)
    att_finalize(e, 57)
    e("s_nop 4")
    att_init(e)
    e("s_mov_b32 s59, 1")
    e.lab("k3_lb")
    e("s_cmp_ge_u32 s59, s47")
    e("s_cbranch_scc1 k3_lb_end")
    att_body(e, False, 64)
    e("s_add_u32 s59, s59, 1")
    e("s_branch k3_lb")
    e.lab("k3_lb_end")
    att_body(e, True, None)
    att_finalize(e, 58)
    e.lab("k3_end")
    e("s_endpgm")


def k4(e):
    kn = "k4_kernel"
    e.l.append(f".p2align 8\n{kn}:")
    common_entry(e)
    e("s_cmp_ge_u32 s2, 224")
    e("s_cbranch_scc1 k4_end")
    e("s_load_dwordx2 s[6:7], s[0:1], 0")
    e("s_load_dwordx2 s[32:33], s[0:1], 40")
    e("s_load_dwordx2 s[34:35], s[0:1], 72")
    e("s_load_dwordx2 s[36:37], s[0:1], 80")
    e("s_and_b32 s26, s2, 31")
    e("s_lshl_b32 s26, s26, 6")
    e("s_lshr_b32 s27, s2, 5")
    e("s_lshl_b32 s27, s27, 6")
    e("s_waitcnt lgkmcnt(0)")
    A1, A2 = 64, 128
    AFR, BFR = 192, 208
    vaE, vaO, vb = 4, 5, 6
    var = [8, 9, 10, 11]
    vbr = [12, 13]
    for r in range(128):
        e(f"v_mov_b32 v{64+r}, 0")
    e("s_lshl_b32 s24, s25, 15")
    e("v_and_b32 v3, 31, v2")
    e("v_lshrrev_b32 v14, 5, v2")
    e("v_bfe_u32 v15, v2, 1, 3")
    e("v_xor_b32 v14, v14, v15")
    e("v_lshlrev_b32 v3, 7, v3")
    e("v_lshl_add_u32 v3, v14, 4, v3")
    e("v_add_u32 v3, s24, v3")
    for s2 in range(4):
        e(f"v_xor_b32 v{var[s2]}, {32*s2}, v3")
    e("v_lshrrev_b32 v3, 5, v2")
    e("v_bfe_u32 v14, v2, 2, 2")
    e("v_lshl_add_u32 v3, v3, 3, v14")
    e("v_lshlrev_b32 v3, 7, v3")
    e("v_bfe_u32 v15, v2, 4, 1")
    e("v_lshl_add_u32 v3, v15, 5, v3")
    e("v_and_b32 v15, 3, v2")
    e("v_lshl_add_u32 v3, v15, 3, v3")
    e("v_add_u32 v3, s24, v3")
    e("v_add_u32 v3, 0x2000, v3")
    e("v_bfe_u32 v15, v2, 3, 1")
    for nb in range(2):
        e(f"v_xor_b32 v16, {nb}, v15")
        e(f"v_lshl_add_u32 v{vbr[nb]}, v16, 6, v3")
    e("v_lshrrev_b32 v3, 3, v2")
    e("v_mul_u32_u24 v3, 896, v3")
    e("v_bfe_u32 v14, v2, 2, 1")
    e("v_bfe_u32 v15, v2, 4, 1")
    e("v_xor_b32 v14, v14, v15")
    e("v_lshl_add_u32 v3, v14, 6, v3")
    e("v_and_b32 v14, 3, v2")
    e("v_lshl_add_u32 v3, v14, 4, v3")
    e("s_lshl_b32 s30, s27, 1")
    e(f"v_add_u32 v{vb}, s30, v3")
    def phase(lda, nsteps, accb, sA, sB):
        e("v_lshrrev_b32 v3, 3, v2")
        e("v_add_u32 v3, s26, v3")
        e(f"s_mov_b32 s31, {lda}")
        e("v_mul_lo_u32 v3, v3, s31")
        e("v_and_b32 v14, 7, v2")
        e("v_lshrrev_b32 v15, 4, v2")
        e("v_xor_b32 v16, v14, v15")
        e(f"v_lshl_add_u32 v{vaE}, v16, 4, v3")
        e("v_add_u32 v15, 4, v15")
        e("v_xor_b32 v16, v14, v15")
        e(f"v_lshl_add_u32 v{vaO}, v16, 4, v3")
        e(f"s_mul_i32 s21, s25, {nsteps*128}")
        e(f"s_mul_i32 s22, s25, {nsteps*64*896}")
        def dma():
            for q in range(8):
                e(f"s_add_u32 m0, s24, {q*1024}")
                e(f"s_add_u32 s23, s21, {q*8*lda}")
                e(f"buffer_load_dwordx4 v{vaE if q%2==0 else vaO}, s[{sA}:{sA+3}], s23 offen lds")
            for q in range(8):
                e(f"s_add_u32 m0, s24, {8192+q*1024}")
                e(f"s_add_u32 s23, s22, {q*8*896}")
                e(f"buffer_load_dwordx4 v{vb}, s[{sB}:{sB+3}], s23 offen lds")
        dma()
        e("s_mov_b32 s20, 0")
        L = e.uid("k4l"); Ls = e.uid("k4s")
        e.lab(L)
        e("s_add_u32 s20, s20, 1")
        e(f"s_cmp_ge_u32 s20, {nsteps}")
        e(f"s_cbranch_scc1 {Ls}")
        e("s_add_u32 s21, s21, 128")
        e(f"s_add_u32 s22, s22, {64*896}")
        e("s_xor_b32 s24, s24, 0x4000")
        dma()
        e("s_waitcnt vmcnt(16)")
        e(f"s_branch {Ls}_b")
        e.lab(Ls)
        e("s_waitcnt vmcnt(0)")
        e.lab(f"{Ls}_b")
        for s2 in range(4):
            bb = s2 % 2
            for mt in range(2):
                r = AFR + bb*8 + mt*4
                e(f"ds_read_b128 v[{r}:{r+3}], v{var[s2]} offset:{mt*4096}")
            for nt in range(2):
                r = BFR + bb*8 + nt*4
                e(f"ds_read_b64_tr_b16 v[{r}:{r+1}], v{vbr[nt]} offset:{16*s2*128}")
                e(f"ds_read_b64_tr_b16 v[{r+2}:{r+3}], v{vbr[nt]} offset:{(16*s2+4)*128}")
            e("s_waitcnt lgkmcnt(0)")
            for mt in range(2):
                for nt in range(2):
                    a = AFR + bb*8 + mt*4; b = BFR + bb*8 + nt*4; d = accb + (mt*2+nt)*16
                    e(f"v_mfma_f32_32x32x16_bf16 v[{d}:{d+15}], v[{b}:{b+3}], v[{a}:{a+3}], v[{d}:{d+15}]")
        for v in var + vbr:
            e(f"v_xor_b32 v{v}, 0x4000, v{v}")
        e(f"s_cmp_lt_u32 s20, {nsteps}")
        e(f"s_cbranch_scc1 {L}")
    srd(e, 8, 4, 2048*4096*2, WS_CTX)
    srd(e, 12, 32, 4096*448*2)
    phase(8192, 16, A1, 8, 12)
    e("s_lshl_b32 s24, s25, 15")
    srd(e, 8, 4, 2048*1792*2, WS_ACT)
    srd(e, 12, 34, 1792*448*2)
    phase(3584, 7, A2, 8, 12)
    e("s_nop 15")
    e("s_lshl_b32 s24, s25, 15")
    e("v_lshlrev_b32 v3, 4, v2")
    e("v_add_u32 v3, s24, v3")
    for t in range(8):
        for k in range(4):
            r = 64 + t*16 + k*4
            e(f"ds_write_b128 v3, v[{r}:{r+3}] offset:{t*4096+k*1024}")
    e("s_waitcnt lgkmcnt(0)")
    e("s_barrier")
    e("v_lshlrev_b32 v3, 4, v2")
    e("s_lshl_b32 s30, s25, 12")
    e("v_add_u32 v3, s30, v3")
    e("v_add_u32 v27, 0x10000, v3")
    for w in range(4):
        for which in range(2):
            for k in range(4):
                r = 64 + (w*2+which)*16 + k*4
                e(f"ds_read_b128 v[{r}:{r+3}], v{3 if w < 2 else 27} offset:{(w%2)*32768 + which*16384 + k*1024}")
    srd(e, 8, 6, 2048*448*2)
    srd(e, 16, 36, 2048*448*2)
    e("v_and_b32 v14, 31, v2")
    e("s_lshr_b32 s30, s25, 1")
    e("s_lshl_b32 s30, s30, 5")
    e("s_add_u32 s30, s30, s26")
    e("v_add_u32 v14, s30, v14")
    e("v_mul_u32_u24 v14, 896, v14")
    e("v_lshrrev_b32 v15, 5, v2")
    e("v_lshl_add_u32 v14, v15, 3, v14")
    e("s_and_b32 s30, s25, 1")
    e("s_lshl_b32 s30, s30, 5")
    e("s_add_u32 s30, s30, s27")
    e("s_lshl_b32 s30, s30, 1")
    e("v_add_u32 v14, s30, v14")
    for j in range(4):
        e(f"buffer_load_dwordx2 v[{16+2*j}:{17+2*j}], v14, s[8:11], 0 offen offset:{j*16}")
    e("s_waitcnt lgkmcnt(0)")
    for i in range(16):
        e(f"v_add_f32 v{64+i}, v{64+i}, v{96+i}")
        e(f"v_add_f32 v{128+i}, v{128+i}, v{160+i}")
        e(f"v_add_f32 v{64+i}, v{64+i}, v{128+i}")
        e(f"v_add_f32 v{80+i}, v{80+i}, v{112+i}")
        e(f"v_add_f32 v{144+i}, v{144+i}, v{176+i}")
        e(f"v_add_f32 v{80+i}, v{80+i}, v{144+i}")
    e("s_mov_b32 s31, 0xffff0000")
    e("s_mov_b32 s44, 0xbfb8aa3b")
    def rnd(r0, r1):
        e(f"v_cvt_pk_bf16_f32 v24, v{r0}, v{r1}")
        e(f"v_lshlrev_b32 v{r0}, 16, v24")
        e(f"v_and_b32 v{r1}, s31, v24")
    e("s_waitcnt vmcnt(0)")
    for i in range(0, 16, 2):
        rnd(64+i, 65+i); rnd(80+i, 81+i)
    for i in range(16):
        e(f"v_mul_f32 v25, s44, v{80+i}")
        e("v_exp_f32 v25, v25")
        e("s_nop 0")
        e("v_add_f32 v25, 1.0, v25")
        e("v_rcp_f32 v25, v25")
        e("s_nop 0")
        e(f"v_mul_f32 v{80+i}, v{80+i}, v25")
    for i in range(0, 16, 2):
        rnd(80+i, 81+i)
    for i in range(16):
        e(f"v_mul_f32 v{64+i}, v{64+i}, v{80+i}")
    for i in range(0, 16, 2):
        rnd(64+i, 65+i)
    for j in range(4):
        for t in range(2):
            xr = 16 + 2*j + t
            i = 4*j + 2*t
            e(f"v_lshlrev_b32 v25, 16, v{xr}")
            e(f"v_and_b32 v26, s31, v{xr}")
            e(f"v_add_f32 v25, v25, v{64+i}")
            e(f"v_add_f32 v26, v26, v{65+i}")
            e(f"v_cvt_pk_bf16_f32 v{xr}, v25, v26")
        e(f"buffer_store_dwordx2 v[{16+2*j}:{17+2*j}], v14, s[16:19], 0 offen offset:{j*16}")
    e.lab("k4_end")
    e("s_endpgm")

def wave_sum(e, v, vout):
    e("s_nop 1")
    for sh in (1, 2, 4, 8):
        e(f"v_add_f32_dpp v{v}, v{v}, v{v} row_shr:{sh} row_mask:0xf bank_mask:0xf")
        e("s_nop 1")
    e(f"v_add_f32_dpp v{v}, v{v}, v{v} row_bcast:15 row_mask:0xa bank_mask:0xf")
    e("s_nop 1")
    e(f"v_add_f32_dpp v{v}, v{v}, v{v} row_bcast:31 row_mask:0xc bank_mask:0xf")
    e("s_nop 1")
    e(f"v_readlane_b32 s42, v{v}, 63")
    e("s_nop 1")
    e(f"v_mov_b32 v{vout}, s42")

def bf16_round(e, v, t):
    e(f"v_cvt_pk_bf16_f32 v{t}, v{v}, v{v}")
    e(f"v_lshlrev_b32 v{v}, 16, v{t}")

def kd(name, vg=256, sg=102, acc=256):
    return f""".amdhsa_kernel {name}
  .amdhsa_next_free_vgpr {vg}
  .amdhsa_next_free_sgpr {sg}
  .amdhsa_accum_offset {acc}
  .amdhsa_group_segment_fixed_size 0
  .amdhsa_kernarg_size 104
  .amdhsa_user_sgpr_count 2
  .amdhsa_user_sgpr_kernarg_segment_ptr 1
  .amdhsa_system_sgpr_workgroup_id_x 1
.end_amdhsa_kernel"""

def main():
    e = E()
    launches = [("k1_kernel", 288, 512, 139264), ("k2_kernel", 184, 512, 139264), ("k3_kernel", 256, 256, 157696), ("k4_kernel", 224, 256, 131072)]
    k1(e)
    k2(e)
    k3(e)
    k4(e)
    hdr = open(f"cdna_kernels/{NAME}.s.ref").read().split("; Override launch")[0]
    out = hdr
    for (k, g, b, l) in launches:
        out += f"; @launch kernel={k} grid=({g},1,1) block=({b},1,1) lds={l}\n"
    out += '.amdgcn_target "amdgcn-amd-amdhsa--gfx950"\n.text\n'
    out += "\n".join(e.l) + "\n"
    out += '.section .rodata,"a"\n'
    for (k, g, b, l) in launches:
        out += ".p2align 6\n" + (kd(k, 512, 102, 256) if k == "k3_kernel" else kd(k)) + "\n"
    open(f"cdna_kernels/{NAME}.s", "w").write(out)

if __name__ == "__main__":
    main()
```
